```python
import torch

def _softmax(x, axis=-1):
    return torch.softmax(x, dim=axis)

def _gelu(x):
    return torch.nn.functional.gelu(x, approximate='tanh')

def _silu(x):
    return torch.nn.functional.silu(x)

def _sigmoid(x):
    return torch.sigmoid(x)

def _layernorm(x, axis=-1, eps=1e-05):
    m = x.mean(dim=axis, keepdim=True)
    v = x.var(dim=axis, keepdim=True, unbiased=False)
    return (x - m) / torch.sqrt(v + eps)

def _scatter_add(tgt, idx, src, axis=0):
    return tgt.clone().index_add_(axis, idx, src)

def _segment_sum(src, seg, n):
    out = torch.zeros((n,) + src.shape[1:], dtype=src.dtype)
    return out.index_add_(0, seg, src)

def _pad(x, pw):
    flat = tuple((v for pair in reversed(pw) for v in pair))
    return torch.nn.functional.pad(x, flat)
kernel_name = 'gated_mix__linear_attn_block__mixer_gmlp__prompt'

def setup_inputs():

    _w = lambda a: (lambda t: t.to(torch.bfloat16) if t.is_floating_point() else t)(torch.as_tensor(a))

    def _A_setup():
        B, S, D = (1, 2048, 512)
        return {'x': _w((lambda *s: torch.randn(*s, dtype=torch.bfloat16) * 0.05)(B, S, D)), 'wqkv': _w((lambda *s: torch.randn(*s, dtype=torch.bfloat16) * 1.6)(D, 3 * D)), 'wo': _w((lambda *s: torch.randn(*s, dtype=torch.bfloat16) * 0.2)(D, D))}
    _A_in = _A_setup()

    def _B_setup():
        B, S, D, F = (1, 2048, 512, 1792)
        Fh = F // 2
        return {'x': _w((lambda *s: torch.randn(*s, dtype=torch.bfloat16) * 0.05)(B, S, D)), 'w_in': _w((lambda *s: torch.randn(*s, dtype=torch.bfloat16) * 0.4)(D, 2 * Fh)), 'w_sp': _w(0.01 * (lambda *s: torch.randn(*s, dtype=torch.bfloat16) * 0.4)(S, S)), 'b_sp': _w(1.0 + 0.01 * (lambda *s: torch.randn(*s, dtype=torch.bfloat16) * 0.05)(S)), 'w_out': _w((lambda *s: torch.randn(*s, dtype=torch.bfloat16) * 0.05)(Fh, D))}
    _B_in = _B_setup()
    return {'A_x': _A_in['x'], 'A_wqkv': _A_in['wqkv'], 'A_wo': _A_in['wo'], 'B_x': _B_in['x'], 'B_w_in': _B_in['w_in'], 'B_w_sp': _B_in['w_sp'], 'B_b_sp': _B_in['b_sp'], 'B_w_out': _B_in['w_out'], 'gate_w': _w((lambda *s: torch.randn(*s, dtype=torch.bfloat16) * 0.05)(512) * 16.0)}

def reference(A_x, A_wqkv, A_wo, B_x, B_w_in, B_w_sp, B_b_sp, B_w_out, gate_w):

    def _A_ref(x, wqkv, wo):
        B, S, D = x.shape
        H = 32
        Dh = D // H
        qkv = (lambda x, *d: x.permute(*d))((x @ wqkv).reshape(B, S, 3, H, Dh), 2, 0, 3, 1, 4)
        q, k, v = (qkv[0], qkv[1], qkv[2])
        phi = lambda t: torch.where(t > 0, t + 1, torch.exp(t)) + 1e-06
        pq, pk = (phi(q), phi(k))
        kv = torch.einsum('bhsd,bhse->bhde', pk, v)
        z = torch.einsum('bhsd->bhd', pk)
        num = torch.einsum('bhqd,bhde->bhqe', pq, kv)
        den = torch.einsum('bhqd,bhd->bhq', pq, z)[..., None] + 1e-06
        o = num / den
        return (lambda x, *d: x.permute(*d))(o, 0, 2, 1, 3).reshape(B, S, D) @ wo

    def _B_ref(x, w_in, w_sp, b_sp, w_out):
        B, S, D = x.shape
        F = w_in.shape[-1]
        Fh = F // 2
        z = _gelu(torch.einsum('bsd,df->bsf', x, w_in))
        z1 = z[..., :Fh].clone()
        z2 = _layernorm(z[..., Fh:], axis=-1)
        g = torch.einsum('ts,bsf->btf', w_sp, z2) + b_sp[None, :, None]
        return torch.einsum('bsf,fd->bsd', z1 * g, w_out)
    x = A_x
    g = _sigmoid((x * gate_w).sum(-1, keepdims=True))
    a = _A_ref(x, A_wqkv, A_wo)
    b = _B_ref(x, B_w_in, B_w_sp, B_b_sp, B_w_out)
    return g * a + (1 - g) * b
```

```python
import re

REG_RE = re.compile(r"\b([vas])(?:(\d+)|\[(\d+):(\d+)\])")
TRANS = ("v_exp_f32", "v_log_f32", "v_rcp_f32", "v_rsq_f32", "v_sqrt_f32", "v_sin_f32", "v_cos_f32")


def regs_of(op):
    out = set()
    op = op.strip()
    if op in ("vcc", "vcc_lo", "vcc_hi"):
        return {"vcc"}
    if op == "m0":
        return {"m0"}
    if op in ("exec", "exec_lo", "exec_hi"):
        return {"exec"}
    for m in REG_RE.finditer(op):
        k = m.group(1)
        if m.group(2) is not None:
            out.add(k + m.group(2))
        else:
            for i in range(int(m.group(3)), int(m.group(4)) + 1):
                out.add(k + str(i))
    return out


def split_ops(rest):
    ops, depth, cur = [], 0, ""
    for ch in rest:
        if ch == "[":
            depth += 1
        if ch == "]":
            depth -= 1
        if ch == "," and depth == 0:
            ops.append(cur.strip())
            cur = ""
        else:
            cur += ch
    if cur.strip():
        ops.append(cur.strip())
    return ops


class Ins:
    __slots__ = ("text", "mn", "cls", "defs", "uses", "A", "B", "C", "dpp", "trans", "wide_store", "data", "states", "lds_dma")

    def __init__(self, text):
        self.text = text
        parts = text.split(None, 1)
        mn = parts[0]
        self.mn = mn
        rest = parts[1] if len(parts) > 1 else ""
        ops = split_ops(rest)
        first_tok = [o.split()[0] if o.split() else "" for o in ops]
        self.defs, self.uses = set(), set()
        self.A = self.B = self.C = set()
        self.dpp = "_dpp" in mn
        self.trans = any(mn.startswith(t) for t in TRANS)
        self.wide_store = False
        self.data = set()
        self.states = 1
        self.lds_dma = False
        R = [regs_of(t) for t in first_tok]
        if mn.startswith("v_mfma"):
            self.cls = "mfma"
            self.defs = R[0]
            self.A, self.B, self.C = R[1], R[2], R[3]
            self.uses = R[1] | R[2] | R[3]
        elif mn.startswith("v_"):
            self.cls = "valu"
            self.defs = set(R[0])
            for r in R[1:]:
                self.uses |= r
            if mn.startswith("v_fmac") or self.dpp or "permlane" in mn or mn.startswith("v_dot2c"):
                self.uses |= R[0]
            if "permlane" in mn and "swap" in mn:
                self.defs |= R[1]
            if mn.startswith("v_cndmask") and len(ops) == 3:
                self.uses.add("vcc")
        elif mn.startswith("buffer_") or mn.startswith("global_"):
            self.cls = "vmem"
            if " lds" in (" " + rest + " ").replace(" lds ", " lds ") and rest.rstrip().endswith("lds"):
                self.lds_dma = True
                for r in R:
                    self.uses |= r
                self.uses.add("m0")
            elif "_load" in mn:
                self.defs = set(R[0])
                for r in R[1:]:
                    self.uses |= r
                if "d16" in mn:
                    self.uses |= R[0]
            else:
                for r in R:
                    self.uses |= r
                if mn.startswith("buffer_store"):
                    self.data = set(R[0])
                else:
                    self.data = set(R[1])
                self.wide_store = mn.endswith("x4") or mn.endswith("x3")
        elif mn.startswith("ds_"):
            self.cls = "ds"
            if mn.startswith("ds_read") or "bpermute" in mn:
                self.defs = set(R[0])
                for r in R[1:]:
                    self.uses |= r
            else:
                for r in R:
                    self.uses |= r
        elif mn == "s_nop":
            self.cls = "nop"
            self.states = int(rest.strip(), 0) + 1
        elif mn.startswith("s_"):
            self.cls = "salu"
            nodef = ("s_cmp", "s_waitcnt", "s_barrier", "s_branch", "s_cbranch", "s_sleep", "s_setprio", "s_endpgm", "s_bitcmp")
            if not any(mn.startswith(x) for x in nodef) and R:
                self.defs = set(R[0])
                for r in R[1:]:
                    self.uses |= r
            else:
                for r in R:
                    self.uses |= r
        else:
            raise ValueError("unknown instr " + text)


def need_states(p, c):
    n = 0
    pv = {r for r in p.defs if r[0] in "va" and r != "vcc"}
    ps = {r for r in p.defs if r[0] == "s" or r == "vcc"}
    if p.cls == "valu":
        if c.cls == "mfma" and pv & c.uses:
            n = max(n, 2)
        if c.cls == "valu":
            if p.trans and not c.trans and pv & c.uses:
                n = max(n, 1)
            if p.trans and c.trans and pv & c.uses:
                n = max(n, 1)
            if (c.dpp or "permlane" in c.mn) and pv & c.uses:
                n = max(n, 2)
            if ("readlane" in c.mn or "readfirstlane" in c.mn) and pv & c.uses:
                n = max(n, 1)
            if ps & c.uses:
                n = max(n, 4 if ("readlane" in c.mn or "writelane" in c.mn) else 2)
        if c.cls == "vmem" and ps & c.uses:
            n = max(n, 5)
        if c.cls == "salu" and ps & c.uses:
            n = max(n, 1)
        if c.mn.startswith("s_cbranch_vcc") and "vcc" in ps:
            n = max(n, 1)
    if p.cls == "mfma":
        big = "32x32" in p.mn
        d = p.defs
        if c.cls == "mfma":
            if d & (c.A | c.B):
                n = max(n, 12 if big else 8)
            if d & c.C and not (d == c.C and p.mn == c.mn):
                n = max(n, 10 if big else 6)
            if d & c.defs and not (d == c.C and p.mn == c.mn):
                n = max(n, 10 if big else 6)
        elif c.cls in ("valu", "vmem", "ds"):
            if d & (c.uses | c.defs):
                n = max(n, 12 if big else 8)
        if c.cls == "valu" and p.C & c.defs:
            n = max(n, 7 if big else 3)
    if p.cls == "salu" and "m0" in p.defs and c.lds_dma:
        n = max(n, 1)
    if p.cls == "vmem" and p.wide_store and p.data & c.defs:
        n = max(n, 2 if c.cls in ("valu", "mfma") else 1)
    return n


COST = {"mfma": 8, "valu": 4, "vmem": 8, "ds": 6, "salu": 4, "nop": 4}


class KB:
    def __init__(self):
        self.lines = []
        self.hist = []
        self.vm = {}
        self.lg = {}
        self.t = 0
        self.mfma_free = 0
        self.ninstr = 0
        self.uid = 0
        self.tail = []

    def raw(self, s):
        self.lines.append(s)

    def comment(self, s):
        self.lines.append("    ; " + s)

    def label(self, name):
        self.lines.append(name + ":")

    def newlabel(self, base):
        self.uid += 1
        return "L_%s_%d" % (base, self.uid)

    def _emit(self, ins):
        self.lines.append("    " + ins.text)
        self.hist.append(ins)
        if len(self.hist) > 24:
            self.hist.pop(0)
        self.ninstr += 1
        if ins.cls == "mfma":
            self.t = max(self.t, self.mfma_free) + 8
            self.mfma_free = self.t + 8
        elif ins.cls == "nop":
            self.t += 4 * ins.states
        elif ins.trans:
            self.t += 8
        else:
            self.t += COST[ins.cls]

    def I(self, text):
        for line in text.strip().split("\n"):
            line = line.strip()
            if not line:
                continue
            ins = Ins(line)
            dist = 0
            pad = 0
            for p in reversed(self.hist):
                n = need_states(p, ins)
                if n > dist:
                    pad = max(pad, n - dist)
                dist += p.states
                if dist >= 14:
                    break
            if pad:
                self._emit(Ins("s_nop %d" % (pad - 1)))
            self._emit(ins)

    def vmem(self, text, tag=None):
        self.I(text)
        for k in self.vm:
            self.vm[k] += 1
        if tag is not None:
            self.vm[tag] = 0

    def ds(self, text, tag=None):
        self.I(text)
        for k in self.lg:
            self.lg[k] += 1
        self.uid += 1
        self.lg[tag if tag is not None else ("_", self.uid)] = 0

    def wait(self, vm=None, lg=None):
        nv = nl = None
        if vm is not None:
            tags = vm if isinstance(vm, list) else [vm]
            c = [self.vm[t] for t in tags if t in self.vm]
            if c:
                nv = min(min(c), 63)
        if lg is not None:
            if lg == "all":
                if self.lg:
                    nl = 0
            else:
                tags = lg if isinstance(lg, list) else [lg]
                c = [self.lg[t] for t in tags if t in self.lg]
                if c:
                    nl = min(min(c), 15)
        if nv is None and nl is None:
            return
        s = "s_waitcnt"
        if nv is not None:
            s += " vmcnt(%d)" % nv
            self.vm = {k: v for k, v in self.vm.items() if v < nv}
        if nl is not None:
            s += " lgkmcnt(%d)" % nl
            self.lg = {k: v for k, v in self.lg.items() if v < nl}
        self.I(s)

    def wait_all(self):
        self.I("s_waitcnt vmcnt(0) lgkmcnt(0)")
        self.vm = {}
        self.lg = {}

    def vm_done(self, tag):
        return tag not in self.vm

    def snapshot(self):
        return (dict(self.vm), dict(self.lg), list(self.hist), self.t, self.mfma_free)

    def restore(self, s):
        self.vm, self.lg, self.hist, self.t, self.mfma_free = dict(s[0]), dict(s[1]), list(s[2]), s[3], s[4]

    def join(self, snaps):
        vm, lg = {}, {}
        for s in snaps:
            for k, v in s[0].items():
                vm[k] = min(vm.get(k, 1 << 30), v)
            for k, v in s[1].items():
                lg[k] = min(lg.get(k, 1 << 30), v)
        self.vm, self.lg = vm, lg
        self.hist = []
        self.t = max(s[3] for s in snaps)
        self.mfma_free = 0

    def text(self):
        return "\n".join(self.lines + self.tail) + "\n"
```

```python
import sys, struct, math
from kb import KB

NAME = "gated_mix__linear_attn_block__mixer_gmlp__prompt_kernel"

WS_E = 0
WS_FZ = 0x1000
WS_FH = 0x3000
WS_FZ1 = 0x5000
WS_FKV = 0xA000
WS_FKF = 0xB000
WS_GATE = 0xC000
WS_STATS = 0x10000
WS_ZP = 0x80000
WS_KVF = 0xA0000
WS_KVP = 0x100000
WS_Z2N = 0x300000
WS_Z1 = 0x680000
WS_A3 = 0xA00000
WS_DBG = 0xF80000
WS_SIZE = 0x1000000

TAG0_INC = 0x9E3779B9
TAG1_INC = 0x7F4A7C15

S_X, S_QKV, S_WO, S_WIN, S_SP, S_BSP, S_WOUT, S_GW, S_OUT, S_WS = 4, 8, 12, 16, 20, 24, 28, 32, 36, 40
sW, sT128, sR, sJJ, sAB, sT64, sTag0, sTag1 = 44, 45, 46, 47, 48, 49, 50, 51
sRot1, sRot2, sRot3a, sRot3b, sW4k, sPart = 52, 53, 54, 55, 56, 57
sDma = 58
sT0, sT1, sT2, sT3 = 59, 60, 61, 62
sZoff = 63
sFlagOff = 64
sBase = 65
sStamp0 = 66


def srd(b):
    return "s[%d:%d]" % (b, b + 3)


vLane, vI, vG = 1, 2, 3
vXo, vWi, vWq, vSp, vW3 = 4, 8, 12, 16, 20
vTr, vRd, vRx = 24, 36, 42
vL16, vL16b = 48, 49
vZero, vL8 = 50, 51
vC1, vC2, vOne, vL2e, vEps = 52, 54, 56, 58, 60
vTmpA, vTmpB = 62, 63
vGr = 64
vTag = 66
accA, accB, vWf, accC, vT = 68, 100, 132, 164, 196


def f2u(x):
    return struct.unpack("<I", struct.pack("<f", x))[0]


def V(b, n=1):
    return "v%d" % b if n == 1 else "v[%d:%d]" % (b, b + n - 1)


def A(b, n=1):
    return "a%d" % b if n == 1 else "a[%d:%d]" % (b, b + n - 1)


class Opt:
    win = "nt"
    stamps = False
    gap = 72
    zdepth = 8
    rot = True
    codepf = True
    budget = 20000


class Ring:
    NS = 10

    def __init__(self, k, opt, chunks):
        self.k, self.opt = k, opt
        self.chunks = chunks
        self.free = list(range(self.NS))
        self.slot = {}
        self.nxt = 0
        self.sub = 0
        self.last_t = -10 ** 9
        self.limit = len(chunks)
        self.visible = set()

    def state(self):
        return (list(self.free), dict(self.slot), self.nxt, self.sub, set(self.visible))

    def key(self, n):
        c = self.chunks[n]
        return (c[0], c[1])

    def can_issue(self):
        if self.nxt >= min(self.limit, len(self.chunks)):
            return False
        return self.sub > 0 or bool(self.free)

    def issue_one(self):
        k = self.k
        kind, idx, extra = self.chunks[self.nxt]
        key = (kind, idx)
        if self.sub == 0:
            s = self.free.pop(0)
            self.slot[key] = s
            base = kind.split(":")[0]
            if base == "x":
                k.I("s_lshl_b32 s%d, s%d, 8" % (sDma, sRot1))
                k.I("s_add_u32 s%d, s%d, %d" % (sDma, sDma, idx * 128))
                k.I("s_and_b32 s%d, s%d, 1023" % (sDma, sDma))
                k.I("s_lshl_b32 s%d, s%d, 17" % (sT3, sT128))
                k.I("s_add_u32 s%d, s%d, s%d" % (sDma, sDma, sT3))
            elif base == "W":
                mat, mul_reg, mul, add = extra
                stride = 3584 if mat == "win" else 3072
                k.I("s_add_u32 s%d, s%d, %d" % (sDma, sRot1, idx))
                k.I("s_and_b32 s%d, s%d, 3" % (sDma, sDma))
                k.I("s_mul_i32 s%d, s%d, %d" % (sDma, sDma, 128 * stride))
                if mul_reg is not None:
                    k.I("s_mul_i32 s%d, s%d, %d" % (sT3, mul_reg, mul))
                    k.I("s_add_u32 s%d, s%d, s%d" % (sDma, sDma, sT3))
                if add:
                    k.I("s_add_u32 s%d, s%d, %d" % (sDma, sDma, add))
            elif base == "sp":
                k.I("s_add_u32 s%d, s%d, %d" % (sDma, sRot2, idx))
                k.I("s_and_b32 s%d, s%d, 15" % (sDma, sDma))
                k.I("s_lshl_b32 s%d, s%d, 8" % (sDma, sDma))
                k.I("s_lshl_b32 s%d, s%d, 18" % (sT3, sT64))
                k.I("s_add_u32 s%d, s%d, s%d" % (sDma, sDma, sT3))
            elif base == "wo":
                k.I("s_add_u32 s%d, s%d, %d" % (sDma, sRot3a, idx))
                k.I("s_and_b32 s%d, s%d, 3" % (sDma, sDma))
                k.I("s_lshl_b32 s%d, s%d, 17" % (sDma, sDma))
                k.I("s_lshl_b32 s%d, s%d, 7" % (sT3, sJJ))
                k.I("s_add_u32 s%d, s%d, s%d" % (sDma, sDma, sT3))
            elif base == "wout":
                rot7(k, sDma, idx)
                k.I("s_lshl_b32 s%d, s%d, 17" % (sDma, sDma))
                k.I("s_lshl_b32 s%d, s%d, 7" % (sT3, sJJ))
                k.I("s_add_u32 s%d, s%d, s%d" % (sDma, sDma, sT3))
            k.I("s_add_u32 m0, s%d, %d" % (sW4k, s * 16384))
        base = kind.split(":")[0]
        j = self.sub
        if base == "x":
            vo, sr = vXo, S_X
        elif base == "W":
            vo, sr = (vWi, S_WIN) if extra[0] == "win" else (vWq, S_QKV)
        elif base == "sp":
            vo, sr = vSp, S_SP
        elif base == "wo":
            vo, sr = vW3, S_WO
        else:
            vo, sr = vW3, S_WOUT
        off = " offset:%d" % (1024 * j) if j else ""
        pol = (" " + self.opt.win) if self.opt.win else ""
        k.vmem("buffer_load_dwordx4 v%d, %s, s%d offen%s%s lds" % (vo + j, srd(sr), sDma, off, pol),
               tag=("dma", key) if j == 3 else None)
        self.last_t = k.t
        self.sub += 1
        if self.sub == 4:
            self.sub = 0
            self.nxt += 1

    def issue(self, n):
        for _ in range(n):
            if self.can_issue():
                self.issue_one()

    def pace(self, gap=None):
        gap = self.opt.gap if gap is None else gap
        if self.can_issue() and self.k.t - self.last_t >= gap:
            self.issue_one()

    def ensure_issued(self, key):
        while key not in self.slot or (self.nxt < len(self.chunks) and self.key(self.nxt) == key):
            assert self.can_issue(), ("cannot issue", key, self.free, self.nxt, self.limit)
            self.issue_one()

    def flush(self):
        while self.can_issue():
            self.issue_one()

    def release(self, key):
        self.free.append(self.slot[key])

    def sync(self, need=None, release=()):
        k = self.k
        if need is not None:
            self.ensure_issued(need)
        k.wait(vm=("dma", need) if need is not None else None, lg="all")
        k.I("s_barrier")
        for r in release:
            self.release(r)

    def addr(self, key, extra):
        a = self.slot[key] * 16384 + extra
        return a >> 16, a & 0xFFFF


def rot7(k, dst, idx):
    k.I("s_add_u32 s%d, s%d, %d" % (dst, sRot3b, idx))
    k.I("s_sub_u32 s%d, s%d, 7" % (sT3, dst))
    k.I("s_cmp_ge_u32 s%d, 7" % dst)
    k.I("s_cselect_b32 s%d, s%d, s%d" % (dst, sT3, dst))


class Gen:
    def __init__(self, opt):
        self.opt = opt
        self.k = KB()
        self.nst = 0

    def stamp(self, idx):
        if not self.opt.stamps:
            return
        k = self.k
        k.wait(lg="all")
        k.I("s_memtime s[%d:%d]" % (sStamp0 + 2 * idx, sStamp0 + 2 * idx + 1))
        k.I("s_waitcnt lgkmcnt(0)")

    def dump_stamps(self):
        if not self.opt.stamps:
            return
        k = self.k
        k.I("s_lshl_b32 s%d, s2, 2" % sT0)
        k.I("s_add_u32 s%d, s%d, s%d" % (sT0, sT0, sW))
        k.I("s_lshl_b32 s%d, s%d, 7" % (sT0, sT0))
        k.I("s_add_u32 s%d, s%d, %d" % (sT0, sT0, WS_DBG))
        for i in range(18):
            k.I("v_mov_b32 v%d, s%d" % (vT, sStamp0 + 2 * i))
            k.vmem("buffer_store_dword v%d, v%d, %s, s%d offen offset:%d" % (vT, vZero, srd(S_WS), sT0, 4 * i))
            k.I("s_nop 1")

    def prologue(self):
        k = self.k
        k.I("s_cmp_ge_u32 s2, 256")
        k.I("s_cbranch_scc1 L_end")
        if self.opt.stamps:
            k.I("s_memtime s[98:99]")
            k.I("s_memrealtime s[100:101]")
        k.I("s_load_dwordx16 s[68:83], s[0:1], 0")
        k.I("s_load_dwordx8 s[84:91], s[0:1], 64")
        k.I("s_mov_b32 s3, %d" % self.opt.budget)
        k.I("v_lshrrev_b32 v%d, 6, v0" % vT)
        k.I("v_and_b32 v%d, 63, v0" % vLane)
        k.I("v_readfirstlane_b32 s%d, v%d" % (sW, vT))
        k.I("s_and_b32 s%d, s2, 7" % sT0)
        k.I("s_lshr_b32 s%d, s2, 3" % sT1)
        k.I("s_lshr_b32 s%d, s%d, 1" % (sT128, sT0))
        k.I("s_lshl_b32 s%d, s%d, 2" % (sT128, sT128))
        k.I("s_lshr_b32 s%d, s%d, 3" % (sT2, sT1))
        k.I("s_add_u32 s%d, s%d, s%d" % (sT128, sT128, sT2))
        k.I("s_and_b32 s%d, s%d, 1" % (sR, sT0))
        k.I("s_lshl_b32 s%d, s%d, 3" % (sR, sR))
        k.I("s_and_b32 s%d, s%d, 7" % (sT2, sT1))
        k.I("s_add_u32 s%d, s%d, s%d" % (sR, sR, sT2))
        k.I("s_lshr_b32 s%d, s%d, 1" % (sJJ, sR))
        k.I("s_and_b32 s%d, s%d, 1" % (sAB, sR))
        k.I("s_lshl_b32 s%d, s%d, 1" % (sT64, sT128))
        k.I("s_add_u32 s%d, s%d, s%d" % (sT64, sT64, sAB))
        k.I("s_lshl_b32 s%d, s%d, 12" % (sW4k, sW))
        k.I("s_lshl_b32 s%d, s%d, 2" % (sPart, sT128))
        k.I("s_add_u32 s%d, s%d, s%d" % (sPart, sPart, sW))
        if self.opt.rot:
            k.I("s_add_u32 s%d, s%d, s%d" % (sRot1, sT128, sR))
            k.I("s_and_b32 s%d, s%d, 3" % (sRot1, sRot1))
            k.I("s_lshl_b32 s%d, s%d, 1" % (sRot2, sJJ))
            k.I("s_add_u32 s%d, s%d, s%d" % (sRot2, sRot2, sT64))
            k.I("s_lshl_b32 s%d, s%d, 1" % (sRot2, sRot2))
            k.I("s_and_b32 s%d, s%d, 15" % (sRot2, sRot2))
            k.I("s_add_u32 s%d, s%d, s%d" % (sRot3a, sT64, sJJ))
            k.I("s_and_b32 s%d, s%d, 3" % (sRot3a, sRot3a))
            k.I("s_lshl_b32 s%d, s%d, 1" % (sRot3b, sJJ))
            k.I("s_add_u32 s%d, s%d, s%d" % (sRot3b, sRot3b, sT64))
            k.I("s_and_b32 s%d, s%d, 7" % (sRot3b, sRot3b))
            k.I("s_min_u32 s%d, s%d, 6" % (sRot3b, sRot3b))
        else:
            for s in (sRot1, sRot2, sRot3a, sRot3b):
                k.I("s_mov_b32 s%d, 0" % s)
        u, p, lr, t0, t1, pu, pu6 = vT + 1, vT + 2, vT + 3, vT + 4, vT + 5, vT + 6, vT + 7
        k.I("v_lshrrev_b32 v%d, 3, v%d" % (u, vLane))
        k.I("v_and_b32 v%d, 7, v%d" % (p, vLane))
        k.I("v_lshrrev_b32 v%d, 2, v%d" % (t0, u))
        k.I("v_and_b32 v%d, 3, v%d" % (t1, u))
        k.I("v_lshl_add_u32 v%d, v%d, 3, v%d" % (lr, t0, t1))
        k.I("v_xor_b32 v%d, v%d, v%d" % (pu, p, u))
        k.I("v_lshlrev_b32 v%d, 4, v%d" % (pu, pu))
        k.I("v_and_b32 v%d, 6, v%d" % (t0, u))
        k.I("v_xor_b32 v%d, v%d, v%d" % (pu6, p, t0))
        k.I("v_lshlrev_b32 v%d, 4, v%d" % (pu6, pu6))
        k.I("s_lshl_b32 s%d, s%d, 5" % (sT0, sW))
        k.I("v_add_u32 v%d, s%d, v%d" % (t0, sT0, lr))
        k.I("v_lshl_add_u32 v%d, v%d, 10, v%d" % (vXo, t0, pu))
        for j in range(1, 4):
            k.I("v_add_u32 v%d, %d, v%d" % (vXo + j, (16 * (j & 1) + 4 * (j >> 1)) * 1024 - 1024 * j, vXo))
        for (vo, stride) in ((vWi, 3584), (vWq, 3072)):
            k.I("s_movk_i32 s%d, %d" % (sT1, stride))
            k.I("v_mad_u32_u24 v%d, v%d, s%d, v%d" % (vo, t0, sT1, pu6))
            for j in range(1, 4):
                k.I("v_add_u32 v%d, %d, v%d" % (vo + j, (16 * (j >> 1) + 4 * (j & 1)) * stride - 1024 * j, vo))
        k.I("s_waitcnt lgkmcnt(0)")
        ptr = {S_X: (68, 2048 * 512 * 2), S_QKV: (70, 512 * 1536 * 2), S_WO: (72, 512 * 512 * 2),
               S_WIN: (76, 512 * 1792 * 2), S_SP: (78, 2048 * 2048 * 2), S_BSP: (80, 2048 * 2),
               S_WOUT: (82, 896 * 512 * 2), S_GW: (84, 512 * 2), S_OUT: (86, 2048 * 512 * 2), S_WS: (90, WS_SIZE)}
        for s in (S_X, S_WIN, S_QKV, S_SP, S_WS, S_WO, S_BSP, S_WOUT, S_GW, S_OUT):
            src, size = ptr[s]
            if s == S_SP:
                k.I("s_sub_u32 s%d, s%d, 4096" % (s, src))
                k.I("s_subb_u32 s%d, s%d, 0" % (s + 1, src + 1))
                size += 4096
            else:
                k.I("s_mov_b32 s%d, s%d" % (s, src))
                k.I("s_mov_b32 s%d, s%d" % (s + 1, src + 1))
            k.I("s_mov_b32 s%d, 0x%x" % (s + 2, size))
            k.I("s_mov_b32 s%d, 0x20000" % (s + 3))
        self.pro_regs = (u, p, lr, t0, t1, pu, pu6)

    def prologue2(self):
        k = self.k
        u, p, lr, t0, t1, pu, pu6 = self.pro_regs
        t2, t3 = vT + 8, vT + 9
        k.I("v_and_b32 v%d, 15, v%d" % (vI, vLane))
        k.I("v_lshrrev_b32 v%d, 4, v%d" % (vG, vLane))
        k.I("v_lshlrev_b32 v%d, 4, v%d" % (vL16, vLane))
        k.I("v_add_u32 v%d, 4096, v%d" % (vL16b, vL16))
        k.I("v_lshlrev_b32 v%d, 3, v%d" % (vL8, vLane))
        k.I("v_mov_b32 v%d, 0" % vZero)
        k.I("s_lshr_b32 s%d, s%d, 1" % (sT0, sW))
        k.I("s_lshl_b32 s%d, s%d, 5" % (sT0, sT0))
        k.I("s_and_b32 s%d, s%d, 1" % (sT1, sW))
        k.I("s_lshl_b32 s%d, s%d, 2" % (sT1, sT1))
        k.I("s_add_u32 s%d, s%d, s%d" % (sT0, sT0, sT1))
        k.I("s_add_u32 s%d, s%d, 1" % (sT0, sT0))
        k.I("v_add_u32 v%d, s%d, v%d" % (t2, sT0, lr))
        k.I("v_lshl_add_u32 v%d, v%d, 12, v%d" % (vSp, t2, pu))
        for j in range(1, 4):
            c = 16 * (j & 1) * 4096 + (j >> 1) * 128 - 1024 * j
            if c >= 0:
                k.I("v_add_u32 v%d, %d, v%d" % (vSp + j, c, vSp))
            else:
                k.I("v_subrev_u32 v%d, %d, v%d" % (vSp + j, -c, vSp))
        k.I("s_lshl_b32 s%d, s%d, 5" % (sT0, sW))
        k.I("v_add_u32 v%d, s%d, v%d" % (t2, sT0, u))
        k.I("v_lshl_add_u32 v%d, v%d, 10, v%d" % (vW3, t2, pu6))
        for j in range(1, 4):
            k.I("v_add_u32 v%d, %d, v%d" % (vW3 + j, (16 * (j & 1) + 8 * (j >> 1)) * 1024 - 1024 * j, vW3))
        k.I("v_bfe_u32 v%d, v%d, 2, 3" % (t2, vLane))
        k.I("v_lshrrev_b32 v%d, 5, v%d" % (t3, vLane))
        k.I("v_lshl_add_u32 v%d, v%d, 4, v%d" % (t3, t3, t2))
        k.I("v_lshlrev_b32 v%d, 7, v%d" % (t3, t3))
        k.I("v_and_b32 v%d, 3, v%d" % (t0, vLane))
        k.I("v_lshl_add_u32 v%d, v%d, 3, v%d" % (t3, t0, t3))
        k.I("v_lshrrev_b32 v%d, 1, v%d" % (t2, t2))
        for cb in range(4):
            k.I("v_xor_b32 v%d, %d, v%d" % (t0, cb, t2))
            k.I("v_lshl_add_u32 v%d, v%d, 5, v%d" % (vTr + cb, t0, t3))
            k.I("v_add_u32 v%d, 0x10000, v%d" % (vTr + 4 + cb, vTr + cb))
            k.I("v_add_u32 v%d, 0x20000, v%d" % (vTr + 8 + cb, vTr + cb))
        k.I("v_and_b32 v%d, 7, v%d" % (t2, vI))
        k.I("v_xor_b32 v%d, v%d, v%d" % (t2, t2, vG))
        k.I("v_lshlrev_b32 v%d, 4, v%d" % (t2, t2))
        k.I("v_lshl_add_u32 v%d, v%d, 7, v%d" % (vRd, vI, t2))
        k.I("v_xor_b32 v%d, 64, v%d" % (vRd + 1, vRd))
        for b in range(1, 3):
            for kk in range(2):
                k.I("v_add_u32 v%d, 0x%x, v%d" % (vRd + 2 * b + kk, b << 16, vRd + kk))
        for n in range(6):
            k.I("v_add_u32 v%d, s%d, v%d" % (vRx + n, sW4k, vRd + n))
        c1 = -2.0 * math.sqrt(2.0 / math.pi) * math.log2(math.e)
        for (vr, val) in ((vC1, c1), (vC2, c1 * 0.044715), (vOne, 1.0), (vL2e, math.log2(math.e)), (vEps, 1e-6)):
            k.I("v_mov_b32 v%d, 0x%x" % (vr, f2u(val)))
            k.I("v_mov_b32 v%d, 0x%x" % (vr + 1, f2u(val)))
        k.vmem("buffer_load_dwordx2 %s, v%d, %s, 0 offen sc1" % (V(vTag, 2), vZero, srd(S_WS)), tag="epoch")

    def tag_setup(self):
        k = self.k
        k.wait(vm="epoch")
        k.I("v_add_u32 v%d, 0x%x, v%d" % (vTag, TAG0_INC, vTag))
        k.I("v_add_u32 v%d, 0x%x, v%d" % (vTag + 1, TAG1_INC, vTag + 1))
        k.I("v_readfirstlane_b32 s%d, v%d" % (sTag0, vTag))
        k.I("v_readfirstlane_b32 s%d, v%d" % (sTag1, vTag + 1))

    def code_prefetch(self):
        if not self.opt.codepf:
            return
        k = self.k
        lab = k.newlabel("pc")
        k.I("s_getpc_b64 s[%d:%d]" % (sT0 + 1, sT0 + 2))
        k.label(lab)
        k.raw("    s_sub_u32 s%d, s%d, %s-%s" % (sT0 + 1, sT0 + 1, lab, NAME))
        k.I("s_subb_u32 s%d, s%d, 0" % (sT0 + 2, sT0 + 2))
        k.I("s_lshr_b32 s%d, s2, 3" % sT0)
        k.I("s_lshl_b32 s%d, s%d, 2" % (sT0, sT0))
        k.I("s_add_u32 s%d, s%d, s%d" % (sT0, sT0, sW))
        k.I("s_lshl_b32 s%d, s%d, 10" % (sT0, sT0))
        k.I("v_and_b32 v%d, 7, v%d" % (vTmpA, vLane))
        k.I("v_lshlrev_b32 v%d, 7, v%d" % (vTmpA, vTmpA))
        k.I("v_add_u32 v%d, s%d, v%d" % (vTmpA, sT0, vTmpA))
        k.raw("    v_min_u32 v%d, L_code_end-%s-4, v%d" % (vTmpA, NAME, vTmpA))
        k.vmem("global_load_dword v%d, v%d, s[%d:%d]" % (vTmpB, vTmpA, sT0 + 1, sT0 + 2))

    def poll_issue(self, dst, voff, soff, imm, tag):
        off = " offset:%d" % imm if imm else ""
        txt = "buffer_load_dwordx2 %s, v%d, %s, %s offen%s sc1" % (V(dst, 2), voff, srd(S_WS), soff, off)
        self.k.vmem(txt, tag=tag)
        return txt

    def poll_check(self, dst, txt, tag, mask_lo=None):
        k = self.k
        k.wait(vm=tag)
        chk = k.newlabel("chk")
        rt = k.newlabel("retry")
        k.label(chk)
        k.I("v_xor_b32 v%d, s%d, v%d" % (vTmpA, sTag0, dst))
        k.I("v_bitop3_b32 v%d, v%d, s%d, v%d bitop3:0xbe" % (vTmpA, dst + 1, sTag1, vTmpA))
        k.I("v_cmp_ne_u32 vcc, 0, v%d" % vTmpA)
        if mask_lo is not None:
            k.I("s_and_b32 s%d, vcc_lo, 0x%x" % (sT3, mask_lo))
            k.I("s_cbranch_scc1 %s" % rt)
        else:
            k.I("s_cbranch_vccnz %s" % rt)
        self.retry_tail(rt, chk, [txt])

    def retry_tail(self, rt, chk, loads):
        k = self.k
        cont = k.newlabel("cont")
        k.label(cont)
        k.tail += [rt + ":", "    s_cmp_eq_u32 s3, 0", "    s_cbranch_scc1 " + cont, "    s_sub_u32 s3, s3, 1", "    s_sleep 1"]
        k.tail += ["    " + t for t in loads] + ["    s_waitcnt vmcnt(0)", "    s_branch " + chk]

    def flag_store(self, soff, after):
        k = self.k
        k.wait(vm=after)
        k.vmem("buffer_store_dwordx2 %s, v%d, %s, %s offen sc1" % (V(vTag, 2), vZero, srd(S_WS), soff))

    def tr_read(self, ring, key, ks, n, buf):
        cb, hh = n >> 1, n & 1
        bank, imm = ring.addr(key, ks * 4096 + hh * 1024)
        dst = vWf + buf * 16 + cb * 4 + hh * 2
        self.k.ds("ds_read_b64_tr_b16 %s, v%d offset:%d" % (V(dst, 2), vTr + bank * 4 + cb, imm), tag=("wf", buf, n))

    def x_read(self, ring, c):
        k = self.k
        key = ("x", c)
        ring.ensure_issued(key)
        k.wait(vm=("dma", key))
        for kk in range(2):
            for b in range(2):
                bank, imm = ring.addr(key, b * 2048)
                dst = ((2 * c + kk) * 2 + b) * 4
                k.ds("ds_read_b128 %s, v%d offset:%d" % (A(dst, 4), vRx + bank * 2 + kk, imm), tag=("xf", c))

    def run_lines(self, ring, lines, first_issue=16):
        k = self.k
        steps = [(li, n) for li in range(len(lines)) for n in range(16)]
        ckey = lambda li, n: ("W:%d" % li, n >> 2)
        self.x_read(ring, 0)
        ring.sync(need=ckey(0, 0), release=[("x", 0)])
        for n in range(8):
            self.tr_read(ring, ckey(0, 0), 0, n, 0)
        for si, (li, n) in enumerate(steps):
            L = lines[li]
            buf = si & 1
            nxt = steps[si + 1] if si + 1 < len(steps) else None
            boundary = (n & 3) == 3
            if li == 0 and n == 10:
                self.tag_setup()
            if n in L.get("hooks", {}):
                L["hooks"][n]()
            xrel = []
            if li == 0 and (n & 1) == 1 and n < 15:
                self.x_read(ring, (n + 1) >> 1)
                xrel = [("x", (n + 1) >> 1)]
            if li == 0 and (n & 1) == 0 and n > 0:
                k.wait(lg=("xf", n >> 1))
                if not ((n - 1) & 3) == 3:
                    ring.release(("x", n >> 1))
            rd = 0
            for m in range(8):
                cb, b = m >> 1, m & 1
                if boundary and m == 4:
                    ring.sync(need=ckey(*nxt) if nxt else None, release=[ckey(li, n)] + xrel)
                if b == 0:
                    k.wait(lg=("wf", buf, 2 * cb + 1))
                acc = L["acc"] + (b * 4 + cb) * 4
                xs = A((n * 2 + b) * 4, 4)
                ws = V(vWf + buf * 16 + cb * 4, 4)
                a_, b_ = (xs, ws) if L["orient"] == "S" else (ws, xs)
                k.I("v_mfma_f32_16x16x32_bf16 %s, %s, %s, %s" % (V(acc, 4), a_, b_, "0" if n == 0 else V(acc, 4)))
                if nxt:
                    cnt = 0 if (boundary and m < 4) else (2 if boundary else 1)
                    for _ in range(cnt):
                        self.tr_read(ring, ckey(*nxt), nxt[1] & 3, rd, buf ^ 1)
                        rd += 1
                if li == 0:
                    if m & 1:
                        ring.issue(1)
                else:
                    ring.pace()
            if n == 15:
                L["epi"]()

    def gelu(self, ring, acc, scale_pairs=None):
        k = self.k
        for grp in range(4):
            ps = [acc + grp * 8 + 2 * q for q in range(4)]
            ts = [vT + 2 * q for q in range(4)]
            for x, t in zip(ps, ts):
                k.I("v_pk_mul_f32 %s, %s, %s" % (V(t, 2), V(x, 2), V(x, 2)))
            for x, t in zip(ps, ts):
                k.I("v_pk_fma_f32 %s, %s, %s, %s" % (V(t, 2), V(t, 2), V(vC2, 2), V(vC1, 2)))
            for x, t in zip(ps, ts):
                k.I("v_pk_mul_f32 %s, %s, %s" % (V(t, 2), V(t, 2), V(x, 2)))
            ring.pace()
            for t in range(vT, vT + 8):
                k.I("v_exp_f32 v%d, v%d" % (t, t))
            ring.pace()
            for x, t in zip(ps, ts):
                k.I("v_pk_add_f32 %s, %s, %s" % (V(t, 2), V(t, 2), V(vOne, 2)))
            for t in range(vT, vT + 8):
                k.I("v_rcp_f32 v%d, v%d" % (t, t))
            ring.pace()
            for x, t in zip(ps, ts):
                k.I("v_pk_mul_f32 %s, %s, %s" % (V(x, 2), V(x, 2), V(t, 2)))

    def phi(self, ring, acc):
        k = self.k
        for grp in range(4):
            ps = [acc + grp * 8 + 2 * q for q in range(4)]
            ts = [vT + 2 * q for q in range(4)]
            for x, t in zip(ps, ts):
                k.I("v_pk_mul_f32 %s, %s, %s" % (V(t, 2), V(x, 2), V(vL2e, 2)))
            for t in range(vT, vT + 8):
                k.I("v_exp_f32_e64 v%d, v%d clamp" % (t, t))
            ring.pace()
            for x in range(acc + grp * 8, acc + grp * 8 + 8):
                k.I("v_max_f32 v%d, 0, v%d" % (x, x))
            for x, t in zip(ps, ts):
                k.I("v_pk_add_f32 %s, %s, %s" % (V(x, 2), V(x, 2), V(t, 2)))
            for x, t in zip(ps, ts):
                k.I("v_pk_add_f32 %s, %s, %s" % (V(x, 2), V(x, 2), V(vEps, 2)))
            ring.pace()

    def pack_S(self, acc, dst):
        for cb in range(4):
            for b in range(2):
                for h in range(2):
                    s = acc + (b * 4 + cb) * 4 + 2 * h
                    self.k.I("v_cvt_pk_bf16_f32 v%d, v%d, v%d" % (dst + cb * 4 + b * 2 + h, s, s + 1))

    def pack_F(self, acc, dst):
        for q in range(16):
            self.k.I("v_cvt_pk_bf16_f32 v%d, v%d, v%d" % (dst + q, acc + 2 * q, acc + 2 * q + 1))

    def epi_z2_stats(self, ring):
        k = self.k
        acc = accA
        self.stamp(1)
        self.gelu(ring, acc)
        S, Q = vT + 8, vT + 16
        y = lambda b, cb, h: acc + (b * 4 + cb) * 4 + 2 * h
        for b in range(2):
            for h in range(2):
                k.I("v_pk_add_f32 %s, %s, %s" % (V(S + b * 4 + 2 * h, 2), V(y(b, 0, h), 2), V(y(b, 1, h), 2)))
                k.I("v_pk_mul_f32 %s, %s, %s" % (V(Q + b * 4 + 2 * h, 2), V(y(b, 0, h), 2), V(y(b, 0, h), 2)))
        for cb in range(1, 4):
            for b in range(2):
                for h in range(2):
                    if cb > 1:
                        k.I("v_pk_add_f32 %s, %s, %s" % (V(S + b * 4 + 2 * h, 2), V(S + b * 4 + 2 * h, 2), V(y(b, cb, h), 2)))
                    k.I("v_pk_fma_f32 %s, %s, %s, %s" % (V(Q + b * 4 + 2 * h, 2), V(y(b, cb, h), 2), V(y(b, cb, h), 2), V(Q + b * 4 + 2 * h, 2)))
            ring.pace()
        dpp = lambda d, s, ctl, bm: k.I("v_add_f32_dpp v%d, v%d, v%d %s row_mask:0xf bank_mask:0x%x" % (d, s, s, ctl, bm))
        for X in (S, Q):
            for r in range(4):
                dpp(X + r, X + r, "row_ror:8", 0x3)
        for X in (S, Q):
            for r in range(4):
                dpp(X + r, X + 4 + r, "row_ror:8", 0xc)
        ring.pace()
        for X in (S, Q):
            for r in range(2):
                dpp(X + r, X + r, "row_half_mirror", 0x5)
        for X in (S, Q):
            for r in range(2):
                dpp(X + r, X + 2 + r, "row_half_mirror", 0xa)
        for ctl in ("quad_perm:[1,0,3,2]", "quad_perm:[2,3,0,1]"):
            for X in (S, Q):
                for r in range(2):
                    dpp(X + r, X + r, ctl, 0xf)
        t = vT
        k.I("v_and_b32 v%d, 1, v%d" % (t, vLane))
        k.I("v_cmp_eq_u32 vcc, 1, v%d" % t)
        k.I("v_lshrrev_b32 v%d, 2, v%d" % (t + 1, vLane))
        k.I("v_lshl_add_u32 v%d, v%d, 1, v%d" % (t + 1, t + 1, t))
        k.I("v_lshlrev_b32 v%d, 4, v%d" % (t + 1, t + 1))
        k.I("v_cndmask_b32 v%d, v%d, v%d, vcc" % (vGr, S, S + 1))
        k.I("v_cndmask_b32 v%d, v%d, v%d, vcc" % (vGr + 1, Q, Q + 1))
        k.I("s_mul_i32 s%d, s%d, %d" % (sBase, sPart, 14 * 512))
        k.I("s_add_u32 s%d, s%d, %d" % (sBase, sBase, WS_STATS))
        k.I("s_lshl_b32 s%d, s%d, 9" % (sT0, sR))
        k.I("s_add_u32 s%d, s%d, s%d" % (sT0, sT0, sBase))
        k.vmem("buffer_store_dwordx4 %s, v%d, %s, s%d offen sc1" % (V(vGr, 4), t + 1, srd(S_WS), sT0))
        self.stamp(2)

    ST = vT + 24
    STA = vT + 52

    def stats_issue(self):
        k = self.k
        a = self.STA
        k.I("v_and_b32 v%d, 7, v%d" % (a, vI))
        k.I("v_lshl_add_u32 v%d, v%d, 3, v%d" % (a, vG, a))
        k.I("v_lshlrev_b32 v%d, 4, v%d" % (a, a))
        k.I("v_lshrrev_b32 v%d, 3, v%d" % (a + 1, vI))
        k.I("v_lshl_add_u32 v%d, v%d, 9, v%d" % (a, a + 1, a))
        k.I("v_add_u32 v%d, 4096, v%d" % (a + 1, a))
        self.stats_txt = []
        for n in range(7):
            off = " offset:%d" % ((n & 3) * 1024) if n & 3 else ""
            txt = "buffer_load_dwordx4 %s, v%d, %s, s%d offen%s sc1" % (V(self.ST + 4 * n, 4), a + (n >> 2), srd(S_WS), sBase, off)
            self.stats_txt.append(txt)
            k.vmem(txt, tag="stats" if n == 6 else None)

    def normalize_publish(self, ring):
        k = self.k
        acc, ST = accA, self.ST
        self.stamp(3)
        k.wait(vm="stats")
        chk, rt = k.newlabel("chk"), k.newlabel("retry")
        k.label(chk)
        k.I("v_xor_b32 v%d, s%d, v%d" % (vTmpA, sTag0, ST + 2))
        k.I("v_xor_b32 v%d, s%d, v%d" % (vTmpB, sTag1, ST + 3))
        for n in range(1, 7):
            k.I("v_bitop3_b32 v%d, v%d, s%d, v%d bitop3:0xbe" % (vTmpA, ST + 4 * n + 2, sTag0, vTmpA))
            k.I("v_bitop3_b32 v%d, v%d, s%d, v%d bitop3:0xbe" % (vTmpB, ST + 4 * n + 3, sTag1, vTmpB))
        k.I("v_or_b32 v%d, v%d, v%d" % (vTmpA, vTmpA, vTmpB))
        k.I("v_cmp_ne_u32 vcc, 0, v%d" % vTmpA)
        k.I("s_cbranch_vccnz %s" % rt)
        self.retry_tail(rt, chk, self.stats_txt)
        self.stamp(4)
        for (d, s) in ((0, 1), (2, 3), (4, 5), (0, 2), (4, 6), (0, 4)):
            k.I("v_pk_add_f32 %s, %s, %s" % (V(ST + 4 * d, 2), V(ST + 4 * d, 2), V(ST + 4 * s, 2)))
        k.I("v_add_f32_dpp v%d, v%d, v%d row_ror:8 row_mask:0xf bank_mask:0xf" % (ST, ST, ST))
        k.I("v_add_f32_dpp v%d, v%d, v%d row_ror:8 row_mask:0xf bank_mask:0xf" % (ST + 1, ST + 1, ST + 1))
        mean, var, rs, nm = ST + 4, ST + 5, ST + 6, ST + 7
        k.I("v_mul_f32 v%d, 0x%x, v%d" % (mean, f2u(1.0 / 896), ST))
        k.I("v_mul_f32 v%d, 0x%x, v%d" % (var, f2u(1.0 / 896), ST + 1))
        k.I("v_fma_f32 v%d, -v%d, v%d, v%d" % (var, mean, mean, var))
        k.I("v_max_f32 v%d, 0, v%d" % (var, var))
        k.I("v_add_f32 v%d, 0x%x, v%d" % (var, f2u(1e-5), var))
        k.I("v_rsq_f32 v%d, v%d" % (rs, var))
        k.I("v_mul_f32_e64 v%d, -v%d, v%d" % (nm, mean, rs))
        R, NM = vT, vT + 8
        for q in range(8):
            k.I("v_mov_b32_dpp v%d, v%d row_newbcast:%d row_mask:0xf bank_mask:0xf" % (R + q, rs, q))
        for q in range(8):
            k.I("v_mov_b32_dpp v%d, v%d row_newbcast:%d row_mask:0xf bank_mask:0xf" % (NM + q, nm, q))
        ring.pace()
        for cb in range(4):
            for b in range(2):
                for h in range(2):
                    y = acc + (b * 4 + cb) * 4 + 2 * h
                    k.I("v_pk_fma_f32 %s, %s, %s, %s" % (V(y, 2), V(y, 2), V(R + 4 * b + 2 * h, 2), V(NM + 4 * b + 2 * h, 2)))
        P = ST + 8
        self.pack_S(acc, P)
        k.I("s_lshl_b32 s%d, s%d, 18" % (sT0, sR))
        k.I("s_lshl_b32 s%d, s%d, 11" % (sT1, sPart))
        k.I("s_add_u32 s%d, s%d, s%d" % (sT0, sT0, sT1))
        k.I("s_add_u32 s%d, s%d, %d" % (sT0, sT0, WS_Z2N))
        k.I("s_add_u32 s%d, s%d, %d" % (sT1, sT0, 131072))
        for cb in range(4):
            off = " offset:1024" if cb & 1 else ""
            k.vmem("buffer_store_dwordx4 %s, v%d, %s, s%d offen%s sc1" % (V(P + cb * 4, 4), vL16, srd(S_WS), sT0 + (cb >> 1), off),
                   tag="z2n_st" if cb == 3 else None)
        self.stamp(5)

    def z2n_flag(self):
        k = self.k
        k.I("s_lshl_b32 s%d, s%d, 9" % (sT0, sR))
        k.I("s_lshl_b32 s%d, s%d, 3" % (sT1, sPart))
        k.I("s_add_u32 s%d, s%d, s%d" % (sT0, sT0, sT1))
        k.I("s_add_u32 s%d, s%d, %d" % (sT0, sT0, WS_FZ))
        self.flag_store("s%d" % sT0, "z2n_st")

    def epi_kv(self, ring, accK, accV, pk=None):
        k = self.k
        if pk is None:
            self.phi(ring, accK)
            pk = vT + 8
            self.pack_S(accK, pk)
        pv = vT + 24
        self.pack_S(accV, pv)
        ind = vT + 40
        D = accK
        k.I("v_mov_b32 v%d, 0x3f803f80" % (vT + 44))
        for cb in range(4):
            k.I("v_cmp_eq_u32 vcc, %d, v%d" % (cb, vI))
            for q in range(4):
                k.I("v_cndmask_b32 v%d, v%d, v%d, vcc" % (ind + q + (cb & 1) * 8, vZero, vT + 44))
            k.I("v_mfma_f32_16x16x32_bf16 %s, %s, %s, 0" % (V(D + cb * 4, 4), V(pk + cb * 4, 4), V(pv + cb * 4, 4)))
            k.I("v_mfma_f32_16x16x32_bf16 %s, %s, %s, %s" % (V(D + 16, 4), V(pk + cb * 4, 4), V(ind + (cb & 1) * 8, 4), "0" if cb == 0 else V(D + 16, 4)))
        k.I("s_lshl_b32 s%d, s%d, 18" % (sT0, sJJ))
        k.I("s_lshl_b32 s%d, s%d, 10" % (sT1, sPart))
        k.I("s_add_u32 s%d, s%d, s%d" % (sT0, sT0, sT1))
        k.I("s_add_u32 s%d, s%d, %d" % (sT0, sT0, WS_KVP))
        za = vT + 45
        k.I("v_lshl_add_u32 v%d, v%d, 2, v%d" % (za, vI, vG))
        k.I("v_lshlrev_b32 v%d, 4, v%d" % (za, za))
        k.I("v_cmp_gt_u32 vcc, 4, v%d" % vI)
        k.I("v_mov_b32 v%d, 0x%x" % (za + 1, WS_SIZE))
        k.I("v_cndmask_b32 v%d, v%d, v%d, vcc" % (za, za + 1, za))
        for cb in range(4):
            k.vmem("buffer_store_dwordx4 %s, v%d, %s, s%d offen sc1" % (V(D + cb * 4, 4), vL16, srd(S_WS), sT0))
            if cb < 3:
                k.I("s_add_u32 s%d, s%d, 65536" % (sT0, sT0))
        k.I("s_lshl_b32 s%d, s%d, 14" % (sT0, sJJ))
        k.I("s_lshl_b32 s%d, s%d, 8" % (sT1, sPart))
        k.I("s_add_u32 s%d, s%d, s%d" % (sT0, sT0, sT1))
        k.I("s_add_u32 s%d, s%d, %d" % (sT0, sT0, WS_ZP))
        k.vmem("buffer_store_dwordx4 %s, v%d, %s, s%d offen sc1" % (V(D + 16, 4), za, srd(S_WS), sT0), tag="pub_st")
        k.I("s_lshl_b32 s%d, s%d, 9" % (sFlagOff, sJJ))
        k.I("s_lshl_b32 s%d, s%d, 3" % (sT1, sPart))
        k.I("s_add_u32 s%d, s%d, s%d" % (sFlagOff, sFlagOff, sT1))
        k.I("s_add_u32 s%d, s%d, %d" % (sFlagOff, sFlagOff, WS_FKV))

    def epi_z1(self, ring, acc, half):
        k = self.k
        self.gelu(ring, acc)
        P = vT + 8
        self.pack_F(acc, P)
        k.I("s_mul_i32 s%d, s%d, %d" % (sT0, sPart, 2 * 28 * 1024))
        k.I("s_lshl_b32 s%d, s%d, 12" % (sT1, sJJ))
        k.I("s_add_u32 s%d, s%d, s%d" % (sT0, sT0, sT1))
        k.I("s_add_u32 s%d, s%d, %d" % (sT0, sT0, WS_Z1 + half * 2048))
        k.I("s_add_u32 s%d, s%d, %d" % (sT1, sT0, 28 * 1024))
        for b in range(2):
            for pr in range(2):
                off = " offset:1024" if pr else ""
                k.vmem("buffer_store_dwordx4 %s, v%d, %s, s%d offen%s sc1" % (V(P + b * 8 + pr * 4, 4), vL16, srd(S_WS), sT0 + b, off),
                       tag="pub_st")
        if half == 1:
            k.I("s_lshl_b32 s%d, s%d, 3" % (sFlagOff, sT128))
            k.I("s_add_u32 s%d, s%d, s%d" % (sFlagOff, sFlagOff, sJJ))
            k.I("s_lshl_b32 s%d, s%d, 7" % (sFlagOff, sFlagOff))
            k.I("s_lshl_b32 s%d, s%d, 3" % (sT1, sW))
            k.I("s_add_u32 s%d, s%d, s%d" % (sFlagOff, sFlagOff, sT1))
            k.I("s_add_u32 s%d, s%d, %d" % (sFlagOff, sFlagOff, WS_FZ1))

    @staticmethod
    def stream(lines, main):
        ch = []
        for c in range(4):
            ch += [("x", 2 * c, None), ("W:0", c, lines[0]), ("x", 2 * c + 1, None)]
        for li in range(1, len(lines)):
            ch += [("W:%d" % li, c, lines[li]) for c in range(4)]
        if main:
            ch += [("sp", c, None) for c in range(16)]
        ch += [("wo", c, None) for c in range(4)]
        ch += [("wout", c, None) for c in range(7)]
        return ch

    def start_role(self, lines, main):
        ring = Ring(self.k, self.opt, self.stream(lines, main))
        ring.issue(12)
        self.code_prefetch()
        self.prologue2()
        ring.issue(4)
        self.stamp(0)
        return ring

    def role_main(self, ab):
        k = self.k
        z2 = ("win", sR, 128, 1792)
        if ab == 0:
            wl = [z2, ("qkv", sJJ, 128, 1024), ("qkv", sJJ, 128, 2048)]
        else:
            wl = [z2, ("win", sJJ, 256, 0), ("win", sJJ, 256, 128)]
        ring = self.start_role(wl, True)
        ring.limit = 20 + 16
        o = "S" if ab == 0 else "F"

        def epi3():
            self.stamp(6)
            if ab == 0:
                self.epi_kv(ring, accB, accC)
            else:
                self.epi_z1(ring, accB, 0)
                self.epi_z1(ring, accC, 1)
        lines = [dict(orient="S", acc=accA, epi=lambda: self.epi_z2_stats(ring)),
                 dict(orient=o, acc=accB, epi=lambda: self.normalize_publish(ring), hooks={11: self.stats_issue}),
                 dict(orient=o, acc=accC, epi=epi3, hooks={6: self.z2n_flag})]
        self.run_lines(ring, lines)
        ring.flush()
        return ring

    def phase2(self, ring):
        k, D = self.k, self.opt.zdepth
        Zs = 128
        acc = accA
        Bq = accB
        Z1 = accC
        FL = vT
        self.stamp(7)
        k.I("s_lshr_b32 s%d, s%d, 1" % (sT0, sW))
        k.I("s_lshl_b32 s%d, s%d, 1" % (sT1, sJJ))
        k.I("s_add_u32 s%d, s%d, s%d" % (sT0, sT0, sT1))
        k.I("s_lshl_b32 s%d, s%d, 9" % (sT0, sT0))
        k.I("s_add_u32 s%d, s%d, %d" % (sT2, sT0, WS_FZ))
        txt = self.poll_issue(FL, vL8, "s%d" % sT2, 0, "fz")
        t = vT + 2
        k.I("v_lshrrev_b32 v%d, 2, v%d" % (t, vI))
        k.I("v_and_b32 v%d, 3, v%d" % (t + 1, vI))
        k.I("v_lshl_add_u32 v%d, v%d, 3, v%d" % (t, t, t + 1))
        k.I("v_lshlrev_b32 v%d, 1, v%d" % (t, t))
        k.I("s_lshl_b32 s%d, s%d, 7" % (sT0, sT64))
        for tb in range(4):
            o = (32 * (tb >> 1) + 4 * (tb & 1)) * 2
            k.vmem("buffer_load_ushort v%d, v%d, %s, s%d offen%s" % (Bq + tb * 4, t, srd(S_BSP), sT0, " offset:%d" % o if o else ""), tag="bias")
        k.I("s_lshl_b32 s%d, s%d, 2" % (sBase, sJJ))
        k.I("s_add_u32 s%d, s%d, s%d" % (sBase, sBase, sW))
        k.I("s_lshl_b32 s%d, s%d, 17" % (sBase, sBase))
        k.I("s_add_u32 s%d, s%d, %d" % (sBase, sBase, WS_Z2N))
        self.poll_check(FL, txt, "fz")
        self.stamp(8)

        def zload(n, fb):
            if (n & 3) == 0 and fb == 0:
                k.I("s_add_u32 s%d, s%d, %d" % (sZoff, sRot2, n >> 2))
                k.I("s_and_b32 s%d, s%d, 15" % (sZoff, sZoff))
                k.I("s_lshl_b32 s%d, s%d, 13" % (sZoff, sZoff))
                k.I("s_add_u32 s%d, s%d, s%d" % (sZoff, sZoff, sBase))
            o = (n & 3) * 2048 + fb * 1024
            vo = vL16b if o >= 4096 else vL16
            o &= 4095
            k.vmem("buffer_load_dwordx4 %s, v%d, %s, s%d offen%s sc1" % (A(Zs + ((n % D) * 2 + fb) * 4, 4), vo, srd(S_WS), sZoff, " offset:%d" % o if o else ""),
                   tag=("z", n, fb))

        def aread(n, tb):
            key = ("sp", n >> 2)
            ks = n & 3
            bank, imm = ring.addr(key, tb * 4096 + (ks >> 1) * 2048)
            k.ds("ds_read_b128 %s, v%d offset:%d" % (V(vWf + (n & 1) * 16 + tb * 4, 4), vRd + bank * 2 + (ks & 1), imm), tag=("af", n & 1, tb))

        for n in range(D - 1):
            zload(n, 0)
            zload(n, 1)
        self.flag_store("s%d" % sFlagOff, "pub_st")
        k.wait(vm="bias")
        for tb in range(4):
            k.I("v_lshlrev_b32 v%d, 16, v%d" % (Bq + tb * 4, Bq + tb * 4))
        for tb in range(4):
            for q in range(1, 4):
                k.I("v_mov_b32 v%d, v%d" % (Bq + tb * 4 + q, Bq + tb * 4))
        ring.sync(need=("sp", 0))
        for tb in range(4):
            aread(0, tb)
        hooks = {}

        def z1_poll():
            k.I("s_lshl_b32 s%d, s%d, 3" % (sT2, sT128))
            k.I("s_add_u32 s%d, s%d, s%d" % (sT2, sT2, sJJ))
            k.I("s_lshl_b32 s%d, s%d, 7" % (sT2, sT2))
            k.I("s_add_u32 s%d, s%d, %d" % (sT2, sT2, WS_FZ1))
            k.I("v_and_b32 v%d, 24, v%d" % (FL + 2, vL8))
            self.z1txt = self.poll_issue(FL, FL + 2, "s%d" % sT2, 0, "fz1")

        def z1_load():
            self.poll_check(FL, self.z1txt, "fz1")
            k.I("s_mul_i32 s%d, s%d, %d" % (sT0, sT64, 4 * 28 * 1024))
            k.I("s_lshl_b32 s%d, s%d, 2" % (sT1, sJJ))
            k.I("s_add_u32 s%d, s%d, s%d" % (sT1, sT1, sW))
            k.I("s_lshl_b32 s%d, s%d, 10" % (sT1, sT1))
            k.I("s_add_u32 s%d, s%d, s%d" % (sT0, sT0, sT1))
            k.I("s_add_u32 s%d, s%d, %d" % (sT0, sT0, WS_Z1))
            for tb in range(4):
                k.vmem("buffer_load_dwordx4 %s, v%d, %s, s%d offen sc1" % (V(Z1 + tb * 4, 4), vL16, srd(S_WS), sT0), tag="z1")
                if tb < 3:
                    k.I("s_add_u32 s%d, s%d, %d" % (sT0, sT0, 28 * 1024))

        def z1_unpack(tb):
            k.wait(vm="z1")
            for q in range(4):
                fb, h = q >> 1, q & 1
                d = accB + (fb * 4 + tb) * 4 + 2 * h
                k.I("v_lshlrev_b32 v%d, 16, v%d" % (d, Z1 + tb * 4 + q))
                k.I("v_and_b32 v%d, 0xffff0000, v%d" % (d + 1, Z1 + tb * 4 + q))
        hooks[28] = z1_poll
        hooks[38] = z1_load
        for tb in range(4):
            hooks[49 + tb] = (lambda tb=tb: z1_unpack(tb))
        hooks[64 - D + 1] = lambda: setattr(ring, "limit", 36 + 4)
        for n in range(64):
            boundary = (n & 3) == 3
            if n in hooks:
                hooks[n]()
            k.wait(vm=("z", n, 1))
            rd = 0
            for m in range(8):
                tb, fb = m >> 1, m & 1
                if boundary and m == 4:
                    ring.sync(need=("sp", (n + 1) >> 2) if n < 63 else None, release=[("sp", n >> 2)])
                if fb == 0:
                    k.wait(lg=("af", n & 1, tb))
                d = acc + (fb * 4 + tb) * 4
                k.I("v_mfma_f32_16x16x32_bf16 %s, %s, %s, %s" % (V(d, 4), A(Zs + ((n % D) * 2 + fb) * 4, 4), V(vWf + (n & 1) * 16 + tb * 4, 4),
                                                                V(Bq + tb * 4, 4) if n == 0 else V(d, 4)))
                if n < 63:
                    if (boundary and m >= 4) or (not boundary and (m & 1) == 0):
                        aread(n + 1, rd)
                        rd += 1
                nn = n + D - 1
                if m in (1, 3) and nn < 64:
                    zload(nn, m >> 1)
                if m == 5 or (nn >= 64 and m in (1, 3)):
                    ring.issue(1)
        self.stamp(9)
        P = accC
        for fb in range(2):
            for tb in range(4):
                for h in range(2):
                    d = acc + (fb * 4 + tb) * 4 + 2 * h
                    k.I("v_pk_mul_f32 %s, %s, %s" % (V(d, 2), V(d, 2), V(accB + (fb * 4 + tb) * 4 + 2 * h, 2)))
        k.I("s_mul_i32 s%d, s%d, %d" % (sT0, sT64, 4 * 44 * 1024))
        k.I("s_lshl_b32 s%d, s%d, 2" % (sT1, sJJ))
        k.I("s_add_u32 s%d, s%d, s%d" % (sT1, sT1, sW))
        k.I("s_lshl_b32 s%d, s%d, 3" % (sFlagOff, sT1))
        k.I("s_lshl_b32 s%d, s%d, 10" % (sT1, sT1))
        k.I("s_add_u32 s%d, s%d, s%d" % (sT0, sT0, sT1))
        k.I("s_add_u32 s%d, s%d, %d" % (sT0, sT0, WS_A3 + 16 * 1024))
        for tb in range(4):
            for fb in range(2):
                for h in range(2):
                    d = acc + (fb * 4 + tb) * 4 + 2 * h
                    k.I("v_cvt_pk_bf16_f32 v%d, v%d, v%d" % (P + tb * 4 + fb * 2 + h, d, d + 1))
            k.vmem("buffer_store_dwordx4 %s, v%d, %s, s%d offen sc1" % (V(P + tb * 4, 4), vL16, srd(S_WS), sT0), tag="pub_st")
            if tb < 3:
                k.I("s_add_u32 s%d, s%d, %d" % (sT0, sT0, 44 * 1024))
        k.I("s_lshl_b32 s%d, s%d, 8" % (sT1, sT64))
        k.I("s_add_u32 s%d, s%d, s%d" % (sFlagOff, sFlagOff, sT1))
        k.I("s_add_u32 s%d, s%d, %d" % (sFlagOff, sFlagOff, WS_FH))

    def phase3(self, ring):
        k = self.k
        FL = vT
        accO, accH = accA, accA + 16
        ring.limit = len(ring.chunks)
        k.I("s_lshl_b32 s%d, s%d, 8" % (sT2, sT64))
        k.I("s_add_u32 s%d, s%d, %d" % (sT2, sT2, WS_FH))
        k.I("v_and_b32 v%d, 0xf8, v%d" % (FL + 2, vL8))
        ring.issue(6)
        self.flag_store("s%d" % sFlagOff, "pub_st")
        self.stamp(10)
        txt = self.poll_issue(FL, FL + 2, "s%d" % sT2, 0, "fo")
        k.I("s_lshl_b32 s%d, s%d, 2" % (sBase, sT64))
        k.I("s_add_u32 s%d, s%d, s%d" % (sBase, sBase, sW))
        k.I("s_lshl_b32 s%d, s%d, 6" % (sT0, sBase))
        k.I("s_mul_i32 s%d, s%d, %d" % (sBase, sBase, 44 * 1024))
        k.I("s_add_u32 s%d, s%d, %d" % (sBase, sBase, WS_A3))
        k.I("s_add_u32 s%d, s%d, %d" % (sT0, sT0, WS_GATE))
        ring.issue(6)
        self.poll_check(FL, txt, "fo", mask_lo=0xf0000000)
        self.stamp(11)
        gt = vT + 4
        k.I("v_lshlrev_b32 v%d, 2, v%d" % (gt + 1, vI))
        k.vmem("buffer_load_dword v%d, v%d, %s, s%d offen sc1" % (gt, gt + 1, srd(S_WS), sT0), tag="gate")

        def aload(part, c):
            if part == 0:
                k.I("s_add_u32 s%d, s%d, %d" % (sZoff, sRot3a, c))
                k.I("s_and_b32 s%d, s%d, 3" % (sZoff, sZoff))
            else:
                rot7(k, sZoff, c)
                k.I("s_add_u32 s%d, s%d, 4" % (sZoff, sZoff))
            k.I("s_lshl_b32 s%d, s%d, 12" % (sZoff, sZoff))
            k.I("s_add_u32 s%d, s%d, s%d" % (sZoff, sZoff, sBase))
            for q in range(4):
                n = (part * 4 + c) * 4 + q
                k.vmem("buffer_load_dwordx4 %s, v%d, %s, s%d offen%s sc1" % (A(n * 4, 4), vL16, srd(S_WS), sZoff, " offset:%d" % (q * 1024) if q else ""),
                       tag=("a3", n))
        for c in range(4):
            aload(0, c)
        ring.flush()
        ckey = lambda n: ("wo", n >> 2) if n < 16 else ("wout", (n - 16) >> 2)
        ring.sync(need=ckey(0))
        for q in range(8):
            self.tr_read(ring, ckey(0), 0, q, 0)
        for n in range(44):
            buf = n & 1
            boundary = (n & 3) == 3
            if n == 12:
                self.htxt = self.poll_issue(FL, FL + 2, "s%d" % sT2, 0, "fh")
            if n == 16:
                self.stamp(12)
                self.poll_check(FL, self.htxt, "fh", mask_lo=0x0fffffff)
                self.stamp(13)
                for c in range(7):
                    aload(1, c)
            k.wait(vm=("a3", n))
            acc = accO if n < 16 else accH
            rd = 0
            for nb in range(4):
                if boundary and nb == 2:
                    ring.sync(need=ckey(n + 1) if n < 43 else None, release=[ckey(n)])
                    ring.flush()
                k.wait(lg=("wf", buf, 2 * nb + 1))
                d = acc + nb * 4
                k.I("v_mfma_f32_16x16x32_bf16 %s, %s, %s, %s" % (V(d, 4), V(vWf + buf * 16 + nb * 4, 4), A(n * 4, 4), "0" if n in (0, 16) else V(d, 4)))
                if n < 43:
                    cnt = (0 if nb < 2 else 4) if boundary else 2
                    for _ in range(cnt):
                        self.tr_read(ring, ckey(n + 1), (n + 1) & 3, rd, buf ^ 1)
                        rd += 1
        self.stamp(14)
        k.wait(vm="gate")
        k.I("v_mov_b32 v%d, v%d" % (gt + 1, gt))
        for q in range(8):
            k.I("v_pk_add_f32 %s, %s, %s neg_lo:[0,1] neg_hi:[0,1]" % (V(accO + 2 * q, 2), V(accO + 2 * q, 2), V(accH + 2 * q, 2)))
        for q in range(8):
            k.I("v_pk_fma_f32 %s, %s, %s, %s" % (V(accO + 2 * q, 2), V(accO + 2 * q, 2), V(gt, 2), V(accH + 2 * q, 2)))
        P = accB
        for q in range(8):
            k.I("v_cvt_pk_bf16_f32 v%d, v%d, v%d" % (P + q, accO + 2 * q, accO + 2 * q + 1))
        wa, ra, ga = vT + 8, vT + 9, vT + 10
        k.I("v_mul_u32_u24 v%d, 144, v%d" % (wa, vI))
        k.I("v_lshl_add_u32 v%d, v%d, 3, v%d" % (wa, vG, wa))
        k.I("v_add_u32 v%d, s%d, v%d" % (wa, sW4k, wa))
        slot = ring.free[0] * 16384
        k.I("v_add_u32 v%d, %d, v%d" % (wa, slot, wa))
        for nb in range(4):
            k.ds("ds_write_b64 v%d, %s offset:%d" % (wa, V(P + 2 * nb, 2), nb * 32))
        u, p = vT + 11, vT + 12
        k.I("v_lshrrev_b32 v%d, 3, v%d" % (u, vLane))
        k.I("v_and_b32 v%d, 7, v%d" % (p, vLane))
        k.I("v_mul_u32_u24 v%d, 144, v%d" % (ra, u))
        k.I("v_lshl_add_u32 v%d, v%d, 4, v%d" % (ra, p, ra))
        k.I("v_add_u32 v%d, s%d, v%d" % (ra, sW4k, ra))
        k.I("v_add_u32 v%d, %d, v%d" % (ra, slot, ra))
        k.I("v_lshrrev_b32 v%d, 2, v%d" % (ga, u))
        k.I("v_and_b32 v%d, 3, v%d" % (u, u))
        k.I("v_lshl_add_u32 v%d, v%d, 3, v%d" % (ga, ga, u))
        k.I("v_lshlrev_b32 v%d, 10, v%d" % (ga, ga))
        k.I("v_lshl_add_u32 v%d, v%d, 4, v%d" % (ga, p, ga))
        k.I("s_lshl_b32 s%d, s%d, 6" % (sT0, sT64))
        k.I("s_lshr_b32 s%d, s%d, 1" % (sT1, sW))
        k.I("s_lshl_b32 s%d, s%d, 5" % (sT1, sT1))
        k.I("s_add_u32 s%d, s%d, s%d" % (sT0, sT0, sT1))
        k.I("s_and_b32 s%d, s%d, 1" % (sT1, sW))
        k.I("s_lshl_b32 s%d, s%d, 2" % (sT1, sT1))
        k.I("s_add_u32 s%d, s%d, s%d" % (sT0, sT0, sT1))
        k.I("s_lshl_b32 s%d, s%d, 10" % (sT0, sT0))
        k.I("s_lshl_b32 s%d, s%d, 7" % (sT1, sJJ))
        k.I("s_add_u32 s%d, s%d, s%d" % (sT0, sT0, sT1))
        k.I("s_add_u32 s%d, s%d, %d" % (sT1, sT0, 16 * 1024))
        k.wait(lg="all")
        for j in range(2):
            k.ds("ds_read_b128 %s, v%d offset:%d" % (V(P + 8 + 4 * j, 4), ra, j * 8 * 144), tag=("o", j))
        for j in range(2):
            k.wait(lg=("o", j))
            k.vmem("buffer_store_dwordx4 %s, v%d, %s, s%d offen" % (V(P + 8 + 4 * j, 4), ga, srd(S_OUT), sT0 + j))
        self.stamp(15)
        self.dump_stamps()

    def role_spare(self, s):
        k = self.k
        PQ = [100, 116, 164, 180, 212]
        if s == 0:
            wl = [("qkv", None, 0, 1024 + 7 * 128), ("qkv", None, 0, 2048 + 7 * 128)] + [("qkv", None, 0, L * 128) for L in range(3)]
            qlines = [0, 1, 2]
        else:
            wl = [("qkv", None, 0, L * 128) for L in range(3, 8)]
            qlines = [3, 4, 5, 6, 7]
        ring = self.start_role(wl, False)
        ring.limit = len(ring.chunks) - 2
        PK = 228

        def epi_q(n):
            self.phi(ring, accA)
            self.pack_F(accA, PQ[n])

        def epi_k():
            self.phi(ring, accA)
            self.pack_S(accA, PK)

        def epi_v():
            self.epi_kv_spare(ring, PK)

        def gate():
            gw, bc, D = vT + 8, vT + 12, vT + 20
            k.wait(vm="gw")
            for n in range(16):
                bb = bc + (n & 1) * 4
                for q in range(4):
                    k.I("v_mov_b32_dpp v%d, v%d row_newbcast:%d row_mask:0xf bank_mask:0xf" % (bb + q, gw + q, n))
                for b in range(2):
                    k.I("v_mfma_f32_16x16x32_bf16 %s, %s, %s, %s" % (V(D + 4 * b, 4), V(bb, 4), A((n * 2 + b) * 4, 4), "0" if n == 0 else V(D + 4 * b, 4)))
                ring.pace()
            for b in range(2):
                k.I("v_mul_f32_e64 v%d, -v%d, v%d" % (D + 4 * b, D + 4 * b, vL2e))
            for b in range(2):
                k.I("v_exp_f32 v%d, v%d" % (D + 4 * b, D + 4 * b))
            for b in range(2):
                k.I("v_add_f32 v%d, 1.0, v%d" % (D + 4 * b, D + 4 * b))
            for b in range(2):
                k.I("v_rcp_f32 v%d, v%d" % (D + 4 * b, D + 4 * b))
            k.I("v_lshlrev_b32 v%d, 2, v%d" % (gw, vI))
            k.I("s_lshl_b32 s%d, s%d, 7" % (sT0, sPart))
            k.I("s_add_u32 s%d, s%d, %d" % (sT0, sT0, WS_GATE))
            for b in range(2):
                k.vmem("buffer_store_dword v%d, v%d, %s, s%d offen%s sc1" % (D + 4 * b, gw, srd(S_WS), sT0, " offset:64" if b else ""), tag="pub_st")

        def gw_load():
            gw = vT + 8
            t = vT + 30
            k.I("s_lshl_b32 s%d, s%d, 2" % (sT0, sRot1))
            k.I("v_add_u32 v%d, s%d, v%d" % (t, sT0, vI))
            k.I("v_and_b32 v%d, 15, v%d" % (t, t))
            k.I("v_lshl_add_u32 v%d, v%d, 2, v%d" % (t, t, vG))
            k.I("v_lshlrev_b32 v%d, 4, v%d" % (t, t))
            k.vmem("buffer_load_dwordx4 %s, v%d, %s, 0 offen" % (V(gw, 4), t, srd(S_GW)), tag="gw")

        if s == 0:
            lines = [dict(orient="S", acc=accA, epi=epi_k),
                     dict(orient="S", acc=accA, epi=epi_v),
                     dict(orient="F", acc=accA, epi=lambda: epi_q(0), hooks={6: lambda: self.flag_store("s%d" % sFlagOff, "pub_st")}),
                     dict(orient="F", acc=accA, epi=lambda: epi_q(1)),
                     dict(orient="F", acc=accA, epi=lambda: epi_q(2))]
        else:
            lines = [dict(orient="F", acc=accA, epi=lambda: (gate(), epi_q(0)), hooks={8: gw_load})]
            lines += [dict(orient="F", acc=accA, epi=(lambda n=n: epi_q(n))) for n in range(1, 5)]
        self.run_lines(ring, lines)
        self.stamp(6)
        FL = vT
        k.I("s_lshr_b32 s%d, s%d, 2" % (sT0, sT64))
        k.I("s_lshl_b32 s%d, s%d, 9" % (sT2, sT0))
        k.I("s_add_u32 s%d, s%d, %d" % (sT2, sT2, WS_FKV))
        txt = self.poll_issue(FL, vL8, "s%d" % sT2, 0, "fkv")
        self.poll_check(FL, txt, "fkv")
        self.stamp(7)
        KP = [accA + 4 * n for n in range(8)] + [vWf + 4 * n for n in range(8)]
        k.I("s_lshl_b32 s%d, s%d, 16" % (sT1, sT64))
        k.I("s_lshl_b32 s%d, s%d, 14" % (sT2, sW))
        k.I("s_add_u32 s%d, s%d, s%d" % (sT1, sT1, sT2))
        k.I("s_add_u32 s%d, s%d, %d" % (sT1, sT1, WS_KVP))
        for n in range(16):
            if n and (n & 3) == 0:
                k.I("s_add_u32 s%d, s%d, 4096" % (sT1, sT1))
            k.vmem("buffer_load_dwordx4 %s, v%d, %s, s%d offen%s sc1" % (V(KP[n], 4), vL16, srd(S_WS), sT1, " offset:%d" % ((n & 3) * 1024) if n & 3 else ""),
                   tag=("kp", n))
        ZR, za = vT + 4, vT + 2
        k.I("s_lshl_b32 s%d, s%d, 14" % (sT0, sT0))
        k.I("s_add_u32 s%d, s%d, s%d" % (sT0, sT0, sW4k))
        k.I("s_and_b32 s%d, s%d, 3" % (sT2, sT64))
        k.I("s_lshl_b32 s%d, s%d, 6" % (sT2, sT2))
        k.I("s_add_u32 s%d, s%d, s%d" % (sT0, sT0, sT2))
        k.I("s_add_u32 s%d, s%d, %d" % (sT0, sT0, WS_ZP))
        k.I("v_lshlrev_b32 v%d, 4, v%d" % (za, vG))
        k.I("v_lshl_add_u32 v%d, v%d, 8, v%d" % (za, vI, za))
        k.vmem("buffer_load_dwordx4 %s, v%d, %s, s%d offen sc1" % (V(ZR, 4), za, srd(S_WS), sT0), tag="zp")
        for n in range(1, 16):
            k.wait(vm=("kp", n))
            for h in range(2):
                k.I("v_pk_add_f32 %s, %s, %s" % (V(KP[0] + 2 * h, 2), V(KP[0] + 2 * h, 2), V(KP[n] + 2 * h, 2)))
        k.wait(vm="zp")
        for ctl in ("row_ror:8", "row_ror:4", "row_ror:2", "row_ror:1"):
            for q in range(4):
                k.I("v_add_f32_dpp v%d, v%d, v%d %s row_mask:0xf bank_mask:0xf" % (ZR + q, ZR + q, ZR + q, ctl))
        slot = ring.free[-1] * 16384
        la = vT + 3
        k.I("v_add_u32 v%d, %d, v%d" % (la, slot, vL16))
        k.I("v_add_u32 v%d, s%d, v%d" % (za, sW4k, la))
        k.ds("ds_write_b128 v%d, %s" % (za, V(KP[0], 4)))
        k.ds("ds_write_b128 v%d, %s offset:1024" % (za, V(ZR, 4)))
        k.wait(lg="all")
        k.I("s_barrier")
        for w in range(4):
            k.ds("ds_read_b128 %s, v%d offset:%d" % (V(accA + 8 * w, 4), la, w * 4096))
            k.ds("ds_read_b128 %s, v%d offset:%d" % (V(accA + 8 * w + 4, 4), la, w * 4096 + 1024))
        k.wait(lg="all")
        k.I("s_barrier")
        for w in range(1, 4):
            for h in range(4):
                k.I("v_pk_add_f32 %s, %s, %s" % (V(accA + 2 * h, 2), V(accA + 2 * h, 2), V(accA + 8 * w + 2 * h, 2)))
        for h in range(4):
            k.I("v_cvt_pk_bf16_f32 v%d, v%d, v%d" % (accA + 8 + h, accA + 2 * h, accA + 2 * h + 1))
        k.I("s_lshl_b32 s%d, s%d, 10" % (sT0, sT64))
        k.I("s_add_u32 s%d, s%d, %d" % (sT0, sT0, WS_KVF))
        k.vmem("buffer_store_dwordx4 %s, v%d, %s, s%d offen sc1" % (V(accA + 8, 4), vL16, srd(S_WS), sT0), tag="kvf_st")
        k.I("s_lshl_b32 s%d, s%d, 3" % (sT0, sT64))
        k.I("s_add_u32 s%d, s%d, %d" % (sT0, sT0, WS_FKF))
        self.flag_store("s%d" % sT0, "kvf_st")
        k.I("v_and_b32 v%d, 0xf8, v%d" % (FL + 2, vL8))
        k.I("s_mov_b32 s%d, %d" % (sT2, WS_FKF))
        txt = self.poll_issue(FL, FL + 2, "s%d" % sT2, 0, "fkf")
        self.poll_check(FL, txt, "fkf", mask_lo=(0x00000fff if s == 0 else 0xfffff000))
        self.stamp(8)
        KF = 128
        for n, L in enumerate(qlines):
            k.I("s_mov_b32 s%d, %d" % (sT0, WS_KVF + L * 4096))
            for cb in range(4):
                k.vmem("buffer_load_dwordx4 %s, v%d, %s, s%d offen%s sc1" % (A(KF + (n * 4 + cb) * 4, 4), vL16, srd(S_WS), sT0, " offset:%d" % (cb * 1024) if cb else ""),
                       tag=("kf", n))
        k.I("s_mul_i32 s%d, s%d, %d" % (sBase, sPart, 2 * 44 * 1024))
        k.I("s_add_u32 s%d, s%d, %d" % (sBase, sBase, WS_A3))
        for n, L in enumerate(qlines):
            k.wait(vm=("kf", n))
            NUM, DEN, RC = accA, vWf, 244
            P = 228 if (n & 1) == 0 else vT
            for b in range(2):
                for cb in range(4):
                    q = b * 4 + cb
                    kf = KF + (n * 4 + cb) * 4
                    k.I("v_mfma_f32_16x16x16_bf16 %s, %s, %s, 0" % (V(DEN + q * 4, 4), A(kf + 2, 2), V(PQ[n] + q * 2, 2)))
                    k.I("v_mfma_f32_16x16x16_bf16 %s, %s, %s, 0" % (V(NUM + q * 4, 4), A(kf, 2), V(PQ[n] + q * 2, 2)))
            for q in range(8):
                k.I("v_add_f32 v%d, v%d, v%d" % (RC + q, vEps, DEN + q * 4))
            for q in range(8):
                k.I("v_rcp_f32 v%d, v%d" % (RC + q, RC + q))
            for q in range(8):
                for e in range(4):
                    k.I("v_mul_f32 v%d, v%d, v%d" % (NUM + q * 4 + e, NUM + q * 4 + e, RC + q))
            self.pack_F(NUM, P)
            k.I("s_add_u32 s%d, s%d, %d" % (sT0, sBase, L * 2048))
            k.I("s_add_u32 s%d, s%d, %d" % (sT1, sT0, 44 * 1024))
            for b in range(2):
                for pr in range(2):
                    k.vmem("buffer_store_dwordx4 %s, v%d, %s, s%d offen%s sc1" % (V(P + b * 8 + pr * 4, 4), vL16, srd(S_WS), sT0 + b, " offset:1024" if pr else ""),
                           tag="pub_st")
        k.I("s_lshr_b32 s%d, s%d, 1" % (sFlagOff, sPart))
        k.I("s_lshl_b32 s%d, s%d, 8" % (sFlagOff, sFlagOff))
        k.I("s_and_b32 s%d, s%d, 1" % (sT1, sW))
        k.I("s_lshl_b32 s%d, s%d, 3" % (sT1, sT1))
        k.I("s_add_u32 s%d, s%d, s%d" % (sFlagOff, sFlagOff, sT1))
        k.I("s_add_u32 s%d, s%d, %d" % (sFlagOff, sFlagOff, WS_FH + (28 + 2 * s) * 8))
        self.stamp(9)
        return ring

    def epi_kv_spare(self, ring, pk):
        k = self.k
        for q in range(16):
            k.I("v_mov_b32 v%d, v%d" % (vT + 8 + q, pk + q))
        self.epi_kv(ring, accC, accA, pk=vT + 8)

    def build(self):
        k = self.k
        self.prologue()
        k.I("s_cmp_eq_u32 s%d, 14" % sR)
        k.I("s_cbranch_scc1 L_roleS0")
        k.I("s_cmp_eq_u32 s%d, 15" % sR)
        k.I("s_cbranch_scc1 L_roleS1")
        k.I("s_cmp_eq_u32 s%d, 1" % sAB)
        k.I("s_cbranch_scc1 L_roleB")
        s0 = k.snapshot()
        ra = self.role_main(0)
        k.I("s_nop 7")
        k.I("s_branch L_P2")
        sa = k.snapshot()
        k.label("L_roleB")
        k.restore(s0)
        rb = self.role_main(1)
        k.I("s_nop 7")
        sb = k.snapshot()
        assert ra.state()[:4] == rb.state()[:4], (ra.state(), rb.state())
        k.label("L_P2")
        k.join([sa, sb])
        rb.last_t = -10 ** 9
        self.phase2(rb)
        self.phase3(rb)
        k.I("s_cmp_lg_u32 s2, 0")
        k.I("s_cbranch_scc1 L_end")
        k.vmem("buffer_store_dwordx2 %s, v%d, %s, 0 offen sc1" % (V(vTag, 2), vZero, srd(S_WS)))
        k.I("s_branch L_end")
        snaps, rings = [], []
        for s in range(2):
            k.comment("---------------- role S%d ----------------" % s)
            k.label("L_roleS%d" % s)
            k.restore(s0)
            r = self.role_spare(s)
            r.flush()
            k.I("s_nop 7")
            if s == 0:
                k.I("s_branch L_P3s")
            snaps.append(k.snapshot())
            rings.append(r)
        assert rings[0].state()[:4] == rings[1].state()[:4]
        k.label("L_P3s")
        k.join(snaps)
        self.phase3(rings[1])
        k.label("L_end")
        k.I("s_endpgm")
        k.tail.append("L_code_end:")
        k.tail.append("    s_endpgm")
        return k.text()


HEADER = """; Fused gated_mix(linear attention block, gMLP mixer): one persistent launch, 256 workgroups x 256 threads.
; Generated by gen/gen.py (hand-written generator).
; Kernarg: A_x, A_wqkv, A_wo, B_x, B_w_in, B_w_sp, B_b_sp, B_w_out, gate_w, out, debug, ws
; @launch grid=(256,1,1) block=(256,1,1) lds=163840
.amdgcn_target "amdgcn-amd-amdhsa--gfx950"
.text
.globl %s
.p2align 8
.type %s,@function
%s:
""" % (NAME, NAME, NAME)

FOOTER = """.section .rodata,"a"
.p2align 6
.amdhsa_kernel %s
  .amdhsa_next_free_vgpr 512
  .amdhsa_next_free_sgpr 102
  .amdhsa_accum_offset 256
  .amdhsa_group_segment_fixed_size 0
  .amdhsa_kernarg_size 96
  .amdhsa_user_sgpr_count 2
  .amdhsa_user_sgpr_kernarg_segment_ptr 1
  .amdhsa_system_sgpr_workgroup_id_x 1
.end_amdhsa_kernel
""" % NAME


def generate(**kw):
    opt = Opt()
    for a, b in kw.items():
        assert hasattr(opt, a), a
        setattr(opt, a, b)
    g = Gen(opt)
    body = g.build()
    return HEADER + body + FOOTER


if __name__ == "__main__":
    out = sys.argv[1]
    kw = {}
    for a in sys.argv[2:]:
        key, val = a.split("=")
        try:
            val = int(val)
        except ValueError:
            pass
        kw[key] = val
    open(out, "w").write(generate(**kw))
```

```python
import sys, struct, math
from kb import KB

NAME = "gated_mix__linear_attn_block__mixer_gmlp__prompt_kernel"

WS_E = 0
WS_FZ = 0x1000
WS_FH = 0x3000
WS_FZ1 = 0x5000
WS_FKV = 0xA000
WS_FKF = 0xB000
WS_GATE = 0xC000
WS_STATS = 0x10000
WS_ZP = 0x80000
WS_KVF = 0xA0000
WS_KVP = 0x100000
WS_Z2N = 0x300000
WS_Z1 = 0x680000
WS_A3 = 0xA00000
WS_DBG = 0xF80000
WS_SIZE = 0x1000000

TAG0_INC = 0x9E3779B9
TAG1_INC = 0x7F4A7C15

S_X, S_QKV, S_WO, S_WIN, S_SP, S_BSP, S_WOUT, S_GW, S_OUT, S_WS = 4, 8, 12, 16, 20, 24, 28, 32, 36, 40
sW, sT128, sR, sJJ, sAB, sT64, sTag0, sTag1 = 44, 45, 46, 47, 48, 49, 50, 51
sRot1, sRot2, sRot3a, sRot3b, sW4k, sPart = 52, 53, 54, 55, 56, 57
sDma = 58
sT0, sT1, sT2, sT3 = 59, 60, 61, 62
sZoff = 63
sFlagOff = 64
sBase = 65
sStamp0 = 66


def srd(b):
    return "s[%d:%d]" % (b, b + 3)


vLane, vI, vG = 1, 2, 3
vXo, vWi, vWq, vSp, vW3 = 4, 8, 12, 16, 20
vTr, vRd, vRx = 24, 36, 42
vL16, vL16b = 48, 49
vZero, vL8 = 50, 51
vC1, vC2, vOne, vL2e, vEps = 52, 54, 56, 58, 60
vTmpA, vTmpB = 62, 63
vGr = 64
vTag = 66
accA, accB, vWf, accC, vT = 68, 100, 132, 164, 196


def f2u(x):
    return struct.unpack("<I", struct.pack("<f", x))[0]


def V(b, n=1):
    return "v%d" % b if n == 1 else "v[%d:%d]" % (b, b + n - 1)


def A(b, n=1):
    return "a%d" % b if n == 1 else "a[%d:%d]" % (b, b + n - 1)


class Opt:
    win = "nt"
    stamps = False
    gap = 72
    zdepth = 8
    rot = True
    codepf = True
    budget = 20000


class Ring:
    NS = 10

    def __init__(self, k, opt, chunks):
        self.k, self.opt = k, opt
        self.chunks = chunks
        self.free = list(range(self.NS))
        self.slot = {}
        self.nxt = 0
        self.sub = 0
        self.last_t = -10 ** 9
        self.limit = len(chunks)
        self.visible = set()

    def state(self):
        return (list(self.free), dict(self.slot), self.nxt, self.sub, set(self.visible))

    def key(self, n):
        c = self.chunks[n]
        return (c[0], c[1])

    def can_issue(self):
        if self.nxt >= min(self.limit, len(self.chunks)):
            return False
        return self.sub > 0 or bool(self.free)

    def issue_one(self):
        k = self.k
        kind, idx, extra = self.chunks[self.nxt]
        key = (kind, idx)
        if self.sub == 0:
            s = self.free.pop(0)
            self.slot[key] = s
            base = kind.split(":")[0]
            if base == "x":
                k.I("s_lshl_b32 s%d, s%d, 8" % (sDma, sRot1))
                k.I("s_add_u32 s%d, s%d, %d" % (sDma, sDma, idx * 128))
                k.I("s_and_b32 s%d, s%d, 1023" % (sDma, sDma))
                k.I("s_lshl_b32 s%d, s%d, 17" % (sT3, sT128))
                k.I("s_add_u32 s%d, s%d, s%d" % (sDma, sDma, sT3))
            elif base == "W":
                mat, mul_reg, mul, add = extra
                stride = 3584 if mat == "win" else 3072
                k.I("s_add_u32 s%d, s%d, %d" % (sDma, sRot1, idx))
                k.I("s_and_b32 s%d, s%d, 3" % (sDma, sDma))
                k.I("s_mul_i32 s%d, s%d, %d" % (sDma, sDma, 128 * stride))
                if mul_reg is not None:
                    k.I("s_mul_i32 s%d, s%d, %d" % (sT3, mul_reg, mul))
                    k.I("s_add_u32 s%d, s%d, s%d" % (sDma, sDma, sT3))
                if add:
                    k.I("s_add_u32 s%d, s%d, %d" % (sDma, sDma, add))
            elif base == "sp":
                k.I("s_add_u32 s%d, s%d, %d" % (sDma, sRot2, idx))
                k.I("s_and_b32 s%d, s%d, 15" % (sDma, sDma))
                k.I("s_lshl_b32 s%d, s%d, 8" % (sDma, sDma))
                k.I("s_lshl_b32 s%d, s%d, 18" % (sT3, sT64))
                k.I("s_add_u32 s%d, s%d, s%d" % (sDma, sDma, sT3))
            elif base == "wo":
                k.I("s_add_u32 s%d, s%d, %d" % (sDma, sRot3a, idx))
                k.I("s_and_b32 s%d, s%d, 3" % (sDma, sDma))
                k.I("s_lshl_b32 s%d, s%d, 17" % (sDma, sDma))
                k.I("s_lshl_b32 s%d, s%d, 7" % (sT3, sJJ))
                k.I("s_add_u32 s%d, s%d, s%d" % (sDma, sDma, sT3))
            elif base == "wout":
                rot7(k, sDma, idx)
                k.I("s_lshl_b32 s%d, s%d, 17" % (sDma, sDma))
                k.I("s_lshl_b32 s%d, s%d, 7" % (sT3, sJJ))
                k.I("s_add_u32 s%d, s%d, s%d" % (sDma, sDma, sT3))
            k.I("s_add_u32 m0, s%d, %d" % (sW4k, s * 16384))
        base = kind.split(":")[0]
        j = self.sub
        if base == "x":
            vo, sr = vXo, S_X
        elif base == "W":
            vo, sr = (vWi, S_WIN) if extra[0] == "win" else (vWq, S_QKV)
        elif base == "sp":
            vo, sr = vSp, S_SP
        elif base == "wo":
            vo, sr = vW3, S_WO
        else:
            vo, sr = vW3, S_WOUT
        off = " offset:%d" % (1024 * j) if j else ""
        pol = (" " + self.opt.win) if self.opt.win else ""
        k.vmem("buffer_load_dwordx4 v%d, %s, s%d offen%s%s lds" % (vo + j, srd(sr), sDma, off, pol),
               tag=("dma", key) if j == 3 else None)
        self.last_t = k.t
        self.sub += 1
        if self.sub == 4:
            self.sub = 0
            self.nxt += 1

    def issue(self, n):
        for _ in range(n):
            if self.can_issue():
                self.issue_one()

    def pace(self, gap=None):
        gap = self.opt.gap if gap is None else gap
        if self.can_issue() and self.k.t - self.last_t >= gap:
            self.issue_one()

    def ensure_issued(self, key):
        while key not in self.slot or (self.nxt < len(self.chunks) and self.key(self.nxt) == key):
            assert self.can_issue(), ("cannot issue", key, self.free, self.nxt, self.limit)
            self.issue_one()

    def flush(self):
        while self.can_issue():
            self.issue_one()

    def release(self, key):
        self.free.append(self.slot[key])

    def sync(self, need=None, release=()):
        k = self.k
        if need is not None:
            self.ensure_issued(need)
        k.wait(vm=("dma", need) if need is not None else None, lg="all")
        k.I("s_barrier")
        for r in release:
            self.release(r)

    def addr(self, key, extra):
        a = self.slot[key] * 16384 + extra
        return a >> 16, a & 0xFFFF


def rot7(k, dst, idx):
    k.I("s_add_u32 s%d, s%d, %d" % (dst, sRot3b, idx))
    k.I("s_sub_u32 s%d, s%d, 7" % (sT3, dst))
    k.I("s_cmp_ge_u32 s%d, 7" % dst)
    k.I("s_cselect_b32 s%d, s%d, s%d" % (dst, sT3, dst))


class Gen:
    def __init__(self, opt):
        self.opt = opt
        self.k = KB()
        self.nst = 0

    def stamp(self, idx):
        if not self.opt.stamps:
            return
        k = self.k
        k.wait(lg="all")
        k.I("s_memtime s[%d:%d]" % (sStamp0 + 2 * idx, sStamp0 + 2 * idx + 1))
        k.I("s_waitcnt lgkmcnt(0)")

    def dump_stamps(self):
        if not self.opt.stamps:
            return
        k = self.k
        k.I("s_lshl_b32 s%d, s2, 2" % sT0)
        k.I("s_add_u32 s%d, s%d, s%d" % (sT0, sT0, sW))
        k.I("s_lshl_b32 s%d, s%d, 7" % (sT0, sT0))
        k.I("s_add_u32 s%d, s%d, %d" % (sT0, sT0, WS_DBG))
        for i in range(18):
            k.I("v_mov_b32 v%d, s%d" % (vT, sStamp0 + 2 * i))
            k.vmem("buffer_store_dword v%d, v%d, %s, s%d offen offset:%d" % (vT, vZero, srd(S_WS), sT0, 4 * i))
            k.I("s_nop 1")

    def prologue(self):
        k = self.k
        k.I("s_cmp_ge_u32 s2, 256")
        k.I("s_cbranch_scc1 L_end")
        if self.opt.stamps:
            k.I("s_memtime s[98:99]")
            k.I("s_memrealtime s[100:101]")
        k.I("s_load_dwordx16 s[68:83], s[0:1], 0")
        k.I("s_load_dwordx8 s[84:91], s[0:1], 64")
        k.I("s_mov_b32 s3, %d" % self.opt.budget)
        k.I("v_lshrrev_b32 v%d, 6, v0" % vT)
        k.I("v_and_b32 v%d, 63, v0" % vLane)
        k.I("v_readfirstlane_b32 s%d, v%d" % (sW, vT))
        k.I("s_and_b32 s%d, s2, 7" % sT0)
        k.I("s_lshr_b32 s%d, s2, 3" % sT1)
        k.I("s_lshr_b32 s%d, s%d, 1" % (sT128, sT0))
        k.I("s_lshl_b32 s%d, s%d, 2" % (sT128, sT128))
        k.I("s_lshr_b32 s%d, s%d, 3" % (sT2, sT1))
        k.I("s_add_u32 s%d, s%d, s%d" % (sT128, sT128, sT2))
        k.I("s_and_b32 s%d, s%d, 1" % (sR, sT0))
        k.I("s_lshl_b32 s%d, s%d, 3" % (sR, sR))
        k.I("s_and_b32 s%d, s%d, 7" % (sT2, sT1))
        k.I("s_add_u32 s%d, s%d, s%d" % (sR, sR, sT2))
        k.I("s_lshr_b32 s%d, s%d, 1" % (sJJ, sR))
        k.I("s_and_b32 s%d, s%d, 1" % (sAB, sR))
        k.I("s_lshl_b32 s%d, s%d, 1" % (sT64, sT128))
        k.I("s_add_u32 s%d, s%d, s%d" % (sT64, sT64, sAB))
        k.I("s_lshl_b32 s%d, s%d, 12" % (sW4k, sW))
        k.I("s_lshl_b32 s%d, s%d, 2" % (sPart, sT128))
        k.I("s_add_u32 s%d, s%d, s%d" % (sPart, sPart, sW))
        if self.opt.rot:
            k.I("s_add_u32 s%d, s%d, s%d" % (sRot1, sT128, sR))
            k.I("s_and_b32 s%d, s%d, 3" % (sRot1, sRot1))
            k.I("s_lshl_b32 s%d, s%d, 1" % (sRot2, sJJ))
            k.I("s_add_u32 s%d, s%d, s%d" % (sRot2, sRot2, sT64))
            k.I("s_lshl_b32 s%d, s%d, 1" % (sRot2, sRot2))
            k.I("s_and_b32 s%d, s%d, 15" % (sRot2, sRot2))
            k.I("s_add_u32 s%d, s%d, s%d" % (sRot3a, sT64, sJJ))
            k.I("s_and_b32 s%d, s%d, 3" % (sRot3a, sRot3a))
            k.I("s_lshl_b32 s%d, s%d, 1" % (sRot3b, sJJ))
            k.I("s_add_u32 s%d, s%d, s%d" % (sRot3b, sRot3b, sT64))
            k.I("s_and_b32 s%d, s%d, 7" % (sRot3b, sRot3b))
            k.I("s_min_u32 s%d, s%d, 6" % (sRot3b, sRot3b))
        else:
            for s in (sRot1, sRot2, sRot3a, sRot3b):
                k.I("s_mov_b32 s%d, 0" % s)
        u, p, lr, t0, t1, pu, pu6 = vT + 1, vT + 2, vT + 3, vT + 4, vT + 5, vT + 6, vT + 7
        k.I("v_lshrrev_b32 v%d, 3, v%d" % (u, vLane))
        k.I("v_and_b32 v%d, 7, v%d" % (p, vLane))
        k.I("v_lshrrev_b32 v%d, 2, v%d" % (t0, u))
        k.I("v_and_b32 v%d, 3, v%d" % (t1, u))
        k.I("v_lshl_add_u32 v%d, v%d, 3, v%d" % (lr, t0, t1))
        k.I("v_xor_b32 v%d, v%d, v%d" % (pu, p, u))
        k.I("v_lshlrev_b32 v%d, 4, v%d" % (pu, pu))
        k.I("v_and_b32 v%d, 6, v%d" % (t0, u))
        k.I("v_xor_b32 v%d, v%d, v%d" % (pu6, p, t0))
        k.I("v_lshlrev_b32 v%d, 4, v%d" % (pu6, pu6))
        k.I("s_lshl_b32 s%d, s%d, 5" % (sT0, sW))
        k.I("v_add_u32 v%d, s%d, v%d" % (t0, sT0, lr))
        k.I("v_lshl_add_u32 v%d, v%d, 10, v%d" % (vXo, t0, pu))
        for j in range(1, 4):
            k.I("v_add_u32 v%d, %d, v%d" % (vXo + j, (16 * (j & 1) + 4 * (j >> 1)) * 1024 - 1024 * j, vXo))
        for (vo, stride) in ((vWi, 3584), (vWq, 3072)):
            k.I("s_movk_i32 s%d, %d" % (sT1, stride))
            k.I("v_mad_u32_u24 v%d, v%d, s%d, v%d" % (vo, t0, sT1, pu6))
            for j in range(1, 4):
                k.I("v_add_u32 v%d, %d, v%d" % (vo + j, (16 * (j >> 1) + 4 * (j & 1)) * stride - 1024 * j, vo))
        k.I("s_waitcnt lgkmcnt(0)")
        ptr = {S_X: (68, 2048 * 512 * 2), S_QKV: (70, 512 * 1536 * 2), S_WO: (72, 512 * 512 * 2),
               S_WIN: (76, 512 * 1792 * 2), S_SP: (78, 2048 * 2048 * 2), S_BSP: (80, 2048 * 2),
               S_WOUT: (82, 896 * 512 * 2), S_GW: (84, 512 * 2), S_OUT: (86, 2048 * 512 * 2), S_WS: (90, WS_SIZE)}
        for s in (S_X, S_WIN, S_QKV, S_SP, S_WS, S_WO, S_BSP, S_WOUT, S_GW, S_OUT):
            src, size = ptr[s]
            if s == S_SP:
                k.I("s_sub_u32 s%d, s%d, 4096" % (s, src))
                k.I("s_subb_u32 s%d, s%d, 0" % (s + 1, src + 1))
                size += 4096
            else:
                k.I("s_mov_b32 s%d, s%d" % (s, src))
                k.I("s_mov_b32 s%d, s%d" % (s + 1, src + 1))
            k.I("s_mov_b32 s%d, 0x%x" % (s + 2, size))
            k.I("s_mov_b32 s%d, 0x20000" % (s + 3))
        self.pro_regs = (u, p, lr, t0, t1, pu, pu6)

    def prologue2(self):
        k = self.k
        u, p, lr, t0, t1, pu, pu6 = self.pro_regs
        t2, t3 = vT + 8, vT + 9
        k.I("v_and_b32 v%d, 15, v%d" % (vI, vLane))
        k.I("v_lshrrev_b32 v%d, 4, v%d" % (vG, vLane))
        k.I("v_lshlrev_b32 v%d, 4, v%d" % (vL16, vLane))
        k.I("v_add_u32 v%d, 4096, v%d" % (vL16b, vL16))
        k.I("v_lshlrev_b32 v%d, 3, v%d" % (vL8, vLane))
        k.I("v_mov_b32 v%d, 0" % vZero)
        k.I("s_lshr_b32 s%d, s%d, 1" % (sT0, sW))
        k.I("s_lshl_b32 s%d, s%d, 5" % (sT0, sT0))
        k.I("s_and_b32 s%d, s%d, 1" % (sT1, sW))
        k.I("s_lshl_b32 s%d, s%d, 2" % (sT1, sT1))
        k.I("s_add_u32 s%d, s%d, s%d" % (sT0, sT0, sT1))
        k.I("s_add_u32 s%d, s%d, 1" % (sT0, sT0))
        k.I("v_add_u32 v%d, s%d, v%d" % (t2, sT0, lr))
        k.I("v_lshl_add_u32 v%d, v%d, 12, v%d" % (vSp, t2, pu))
        for j in range(1, 4):
            c = 16 * (j & 1) * 4096 + (j >> 1) * 128 - 1024 * j
            if c >= 0:
                k.I("v_add_u32 v%d, %d, v%d" % (vSp + j, c, vSp))
            else:
                k.I("v_subrev_u32 v%d, %d, v%d" % (vSp + j, -c, vSp))
        k.I("s_lshl_b32 s%d, s%d, 5" % (sT0, sW))
        k.I("v_add_u32 v%d, s%d, v%d" % (t2, sT0, u))
        k.I("v_lshl_add_u32 v%d, v%d, 10, v%d" % (vW3, t2, pu6))
        for j in range(1, 4):
            k.I("v_add_u32 v%d, %d, v%d" % (vW3 + j, (16 * (j & 1) + 8 * (j >> 1)) * 1024 - 1024 * j, vW3))
        k.I("v_bfe_u32 v%d, v%d, 2, 3" % (t2, vLane))
        k.I("v_lshrrev_b32 v%d, 5, v%d" % (t3, vLane))
        k.I("v_lshl_add_u32 v%d, v%d, 4, v%d" % (t3, t3, t2))
        k.I("v_lshlrev_b32 v%d, 7, v%d" % (t3, t3))
        k.I("v_and_b32 v%d, 3, v%d" % (t0, vLane))
        k.I("v_lshl_add_u32 v%d, v%d, 3, v%d" % (t3, t0, t3))
        k.I("v_lshrrev_b32 v%d, 1, v%d" % (t2, t2))
        for cb in range(4):
            k.I("v_xor_b32 v%d, %d, v%d" % (t0, cb, t2))
            k.I("v_lshl_add_u32 v%d, v%d, 5, v%d" % (vTr + cb, t0, t3))
            k.I("v_add_u32 v%d, 0x10000, v%d" % (vTr + 4 + cb, vTr + cb))
            k.I("v_add_u32 v%d, 0x20000, v%d" % (vTr + 8 + cb, vTr + cb))
        k.I("v_and_b32 v%d, 7, v%d" % (t2, vI))
        k.I("v_xor_b32 v%d, v%d, v%d" % (t2, t2, vG))
        k.I("v_lshlrev_b32 v%d, 4, v%d" % (t2, t2))
        k.I("v_lshl_add_u32 v%d, v%d, 7, v%d" % (vRd, vI, t2))
        k.I("v_xor_b32 v%d, 64, v%d" % (vRd + 1, vRd))
        for b in range(1, 3):
            for kk in range(2):
                k.I("v_add_u32 v%d, 0x%x, v%d" % (vRd + 2 * b + kk, b << 16, vRd + kk))
        for n in range(6):
            k.I("v_add_u32 v%d, s%d, v%d" % (vRx + n, sW4k, vRd + n))
        c1 = -2.0 * math.sqrt(2.0 / math.pi) * math.log2(math.e)
        for (vr, val) in ((vC1, c1), (vC2, c1 * 0.044715), (vOne, 1.0), (vL2e, math.log2(math.e)), (vEps, 1e-6)):
            k.I("v_mov_b32 v%d, 0x%x" % (vr, f2u(val)))
            k.I("v_mov_b32 v%d, 0x%x" % (vr + 1, f2u(val)))
        k.vmem("buffer_load_dwordx2 %s, v%d, %s, 0 offen sc1" % (V(vTag, 2), vZero, srd(S_WS)), tag="epoch")

    def tag_setup(self):
        k = self.k
        k.wait(vm="epoch")
        k.I("v_add_u32 v%d, 0x%x, v%d" % (vTag, TAG0_INC, vTag))
        k.I("v_add_u32 v%d, 0x%x, v%d" % (vTag + 1, TAG1_INC, vTag + 1))
        k.I("v_readfirstlane_b32 s%d, v%d" % (sTag0, vTag))
        k.I("v_readfirstlane_b32 s%d, v%d" % (sTag1, vTag + 1))

    def code_prefetch(self):
        if not self.opt.codepf:
            return
        k = self.k
        lab = k.newlabel("pc")
        k.I("s_getpc_b64 s[%d:%d]" % (sT0 + 1, sT0 + 2))
        k.label(lab)
        k.raw("    s_sub_u32 s%d, s%d, %s-%s" % (sT0 + 1, sT0 + 1, lab, NAME))
        k.I("s_subb_u32 s%d, s%d, 0" % (sT0 + 2, sT0 + 2))
        k.I("s_lshr_b32 s%d, s2, 3" % sT0)
        k.I("s_lshl_b32 s%d, s%d, 2" % (sT0, sT0))
        k.I("s_add_u32 s%d, s%d, s%d" % (sT0, sT0, sW))
        k.I("s_lshl_b32 s%d, s%d, 10" % (sT0, sT0))
        k.I("v_and_b32 v%d, 7, v%d" % (vTmpA, vLane))
        k.I("v_lshlrev_b32 v%d, 7, v%d" % (vTmpA, vTmpA))
        k.I("v_add_u32 v%d, s%d, v%d" % (vTmpA, sT0, vTmpA))
        k.raw("    v_min_u32 v%d, L_code_end-%s-4, v%d" % (vTmpA, NAME, vTmpA))
        k.vmem("global_load_dword v%d, v%d, s[%d:%d]" % (vTmpB, vTmpA, sT0 + 1, sT0 + 2))

    def poll_issue(self, dst, voff, soff, imm, tag):
        off = " offset:%d" % imm if imm else ""
        txt = "buffer_load_dwordx2 %s, v%d, %s, %s offen%s sc1" % (V(dst, 2), voff, srd(S_WS), soff, off)
        self.k.vmem(txt, tag=tag)
        return txt

    def poll_check(self, dst, txt, tag, mask_lo=None):
        k = self.k
        k.wait(vm=tag)
        chk = k.newlabel("chk")
        rt = k.newlabel("retry")
        k.label(chk)
        k.I("v_xor_b32 v%d, s%d, v%d" % (vTmpA, sTag0, dst))
        k.I("v_bitop3_b32 v%d, v%d, s%d, v%d bitop3:0xbe" % (vTmpA, dst + 1, sTag1, vTmpA))
        k.I("v_cmp_ne_u32 vcc, 0, v%d" % vTmpA)
        if mask_lo is not None:
            k.I("s_and_b32 s%d, vcc_lo, 0x%x" % (sT3, mask_lo))
            k.I("s_cbranch_scc1 %s" % rt)
        else:
            k.I("s_cbranch_vccnz %s" % rt)
        self.retry_tail(rt, chk, [txt])

    def retry_tail(self, rt, chk, loads):
        k = self.k
        cont = k.newlabel("cont")
        k.label(cont)
        k.tail += [rt + ":", "    s_cmp_eq_u32 s3, 0", "    s_cbranch_scc1 " + cont, "    s_sub_u32 s3, s3, 1", "    s_sleep 1"]
        k.tail += ["    " + t for t in loads] + ["    s_waitcnt vmcnt(0)", "    s_branch " + chk]

    def flag_store(self, soff, after):
        k = self.k
        k.wait(vm=after)
        k.vmem("buffer_store_dwordx2 %s, v%d, %s, %s offen sc1" % (V(vTag, 2), vZero, srd(S_WS), soff))

    def tr_read(self, ring, key, ks, n, buf):
        cb, hh = n >> 1, n & 1
        bank, imm = ring.addr(key, ks * 4096 + hh * 1024)
        dst = vWf + buf * 16 + cb * 4 + hh * 2
        self.k.ds("ds_read_b64_tr_b16 %s, v%d offset:%d" % (V(dst, 2), vTr + bank * 4 + cb, imm), tag=("wf", buf, n))

    def x_read(self, ring, c):
        k = self.k
        key = ("x", c)
        ring.ensure_issued(key)
        k.wait(vm=("dma", key))
        for kk in range(2):
            for b in range(2):
                bank, imm = ring.addr(key, b * 2048)
                dst = ((2 * c + kk) * 2 + b) * 4
                k.ds("ds_read_b128 %s, v%d offset:%d" % (A(dst, 4), vRx + bank * 2 + kk, imm), tag=("xf", c))

    def run_lines(self, ring, lines, first_issue=16):
        k = self.k
        steps = [(li, n) for li in range(len(lines)) for n in range(16)]
        ckey = lambda li, n: ("W:%d" % li, n >> 2)
        self.x_read(ring, 0)
        ring.sync(need=ckey(0, 0), release=[("x", 0)])
        for n in range(8):
            self.tr_read(ring, ckey(0, 0), 0, n, 0)
        for si, (li, n) in enumerate(steps):
            L = lines[li]
            buf = si & 1
            nxt = steps[si + 1] if si + 1 < len(steps) else None
            boundary = (n & 3) == 3
            if li == 0 and n == 10:
                self.tag_setup()
            if n in L.get("hooks", {}):
                L["hooks"][n]()
            xrel = []
            if li == 0 and (n & 1) == 1 and n < 15:
                self.x_read(ring, (n + 1) >> 1)
                xrel = [("x", (n + 1) >> 1)]
            if li == 0 and (n & 1) == 0 and n > 0:
                k.wait(lg=("xf", n >> 1))
                if not ((n - 1) & 3) == 3:
                    ring.release(("x", n >> 1))
            rd = 0
            for m in range(8):
                cb, b = m >> 1, m & 1
                if boundary and m == 4:
                    ring.sync(need=ckey(*nxt) if nxt else None, release=[ckey(li, n)] + xrel)
                if b == 0:
                    k.wait(lg=("wf", buf, 2 * cb + 1))
                acc = L["acc"] + (b * 4 + cb) * 4
                xs = A((n * 2 + b) * 4, 4)
                ws = V(vWf + buf * 16 + cb * 4, 4)
                a_, b_ = (xs, ws) if L["orient"] == "S" else (ws, xs)
                k.I("v_mfma_f32_16x16x32_bf16 %s, %s, %s, %s" % (V(acc, 4), a_, b_, "0" if n == 0 else V(acc, 4)))
                if nxt:
                    cnt = 0 if (boundary and m < 4) else (2 if boundary else 1)
                    for _ in range(cnt):
                        self.tr_read(ring, ckey(*nxt), nxt[1] & 3, rd, buf ^ 1)
                        rd += 1
                if li == 0:
                    if m & 1:
                        ring.issue(1)
                else:
                    ring.pace()
            if n == 15:
                L["epi"]()

    def gelu(self, ring, acc, scale_pairs=None):
        k = self.k
        for grp in range(4):
            ps = [acc + grp * 8 + 2 * q for q in range(4)]
            ts = [vT + 2 * q for q in range(4)]
            for x, t in zip(ps, ts):
                k.I("v_pk_mul_f32 %s, %s, %s" % (V(t, 2), V(x, 2), V(x, 2)))
            for x, t in zip(ps, ts):
                k.I("v_pk_fma_f32 %s, %s, %s, %s" % (V(t, 2), V(t, 2), V(vC2, 2), V(vC1, 2)))
            for x, t in zip(ps, ts):
                k.I("v_pk_mul_f32 %s, %s, %s" % (V(t, 2), V(t, 2), V(x, 2)))
            ring.pace()
            for t in range(vT, vT + 8):
                k.I("v_exp_f32 v%d, v%d" % (t, t))
            ring.pace()
            for x, t in zip(ps, ts):
                k.I("v_pk_add_f32 %s, %s, %s" % (V(t, 2), V(t, 2), V(vOne, 2)))
            for t in range(vT, vT + 8):
                k.I("v_rcp_f32 v%d, v%d" % (t, t))
            ring.pace()
            for x, t in zip(ps, ts):
                k.I("v_pk_mul_f32 %s, %s, %s" % (V(x, 2), V(x, 2), V(t, 2)))

    def phi(self, ring, acc):
        k = self.k
        for grp in range(4):
            ps = [acc + grp * 8 + 2 * q for q in range(4)]
            ts = [vT + 2 * q for q in range(4)]
            for x, t in zip(ps, ts):
                k.I("v_pk_mul_f32 %s, %s, %s" % (V(t, 2), V(x, 2), V(vL2e, 2)))
            for t in range(vT, vT + 8):
                k.I("v_exp_f32_e64 v%d, v%d clamp" % (t, t))
            ring.pace()
            for x in range(acc + grp * 8, acc + grp * 8 + 8):
                k.I("v_max_f32 v%d, 0, v%d" % (x, x))
            for x, t in zip(ps, ts):
                k.I("v_pk_add_f32 %s, %s, %s" % (V(x, 2), V(x, 2), V(t, 2)))
            for x, t in zip(ps, ts):
                k.I("v_pk_add_f32 %s, %s, %s" % (V(x, 2), V(x, 2), V(vEps, 2)))
            ring.pace()

    def pack_S(self, acc, dst):
        for cb in range(4):
            for b in range(2):
                for h in range(2):
                    s = acc + (b * 4 + cb) * 4 + 2 * h
                    self.k.I("v_cvt_pk_bf16_f32 v%d, v%d, v%d" % (dst + cb * 4 + b * 2 + h, s, s + 1))

    def pack_F(self, acc, dst):
        for q in range(16):
            self.k.I("v_cvt_pk_bf16_f32 v%d, v%d, v%d" % (dst + q, acc + 2 * q, acc + 2 * q + 1))

    def epi_z2_stats(self, ring):
        k = self.k
        acc = accA
        self.stamp(1)
        self.gelu(ring, acc)
        S, Q = vT + 8, vT + 16
        y = lambda b, cb, h: acc + (b * 4 + cb) * 4 + 2 * h
        for b in range(2):
            for h in range(2):
                k.I("v_pk_add_f32 %s, %s, %s" % (V(S + b * 4 + 2 * h, 2), V(y(b, 0, h), 2), V(y(b, 1, h), 2)))
                k.I("v_pk_mul_f32 %s, %s, %s" % (V(Q + b * 4 + 2 * h, 2), V(y(b, 0, h), 2), V(y(b, 0, h), 2)))
        for cb in range(1, 4):
            for b in range(2):
                for h in range(2):
                    if cb > 1:
                        k.I("v_pk_add_f32 %s, %s, %s" % (V(S + b * 4 + 2 * h, 2), V(S + b * 4 + 2 * h, 2), V(y(b, cb, h), 2)))
                    k.I("v_pk_fma_f32 %s, %s, %s, %s" % (V(Q + b * 4 + 2 * h, 2), V(y(b, cb, h), 2), V(y(b, cb, h), 2), V(Q + b * 4 + 2 * h, 2)))
            ring.pace()
        dpp = lambda d, s, ctl, bm: k.I("v_add_f32_dpp v%d, v%d, v%d %s row_mask:0xf bank_mask:0x%x" % (d, s, s, ctl, bm))
        for X in (S, Q):
            for r in range(4):
                dpp(X + r, X + r, "row_ror:8", 0x3)
        for X in (S, Q):
            for r in range(4):
                dpp(X + r, X + 4 + r, "row_ror:8", 0xc)
        ring.pace()
        for X in (S, Q):
            for r in range(2):
                dpp(X + r, X + r, "row_half_mirror", 0x5)
        for X in (S, Q):
            for r in range(2):
                dpp(X + r, X + 2 + r, "row_half_mirror", 0xa)
        for ctl in ("quad_perm:[1,0,3,2]", "quad_perm:[2,3,0,1]"):
            for X in (S, Q):
                for r in range(2):
                    dpp(X + r, X + r, ctl, 0xf)
        t = vT
        k.I("v_and_b32 v%d, 1, v%d" % (t, vLane))
        k.I("v_cmp_eq_u32 vcc, 1, v%d" % t)
        k.I("v_lshrrev_b32 v%d, 2, v%d" % (t + 1, vLane))
        k.I("v_lshl_add_u32 v%d, v%d, 1, v%d" % (t + 1, t + 1, t))
        k.I("v_lshlrev_b32 v%d, 4, v%d" % (t + 1, t + 1))
        k.I("v_cndmask_b32 v%d, v%d, v%d, vcc" % (vGr, S, S + 1))
        k.I("v_cndmask_b32 v%d, v%d, v%d, vcc" % (vGr + 1, Q, Q + 1))
        k.I("s_mul_i32 s%d, s%d, %d" % (sBase, sPart, 14 * 512))
        k.I("s_add_u32 s%d, s%d, %d" % (sBase, sBase, WS_STATS))
        k.I("s_lshl_b32 s%d, s%d, 9" % (sT0, sR))
        k.I("s_add_u32 s%d, s%d, s%d" % (sT0, sT0, sBase))
        k.vmem("buffer_store_dwordx4 %s, v%d, %s, s%d offen sc1" % (V(vGr, 4), t + 1, srd(S_WS), sT0))
        self.stamp(2)

    ST = vT + 24
    STA = vT + 52

    def stats_issue(self):
        k = self.k
        a = self.STA
        k.I("v_and_b32 v%d, 7, v%d" % (a, vI))
        k.I("v_lshl_add_u32 v%d, v%d, 3, v%d" % (a, vG, a))
        k.I("v_lshlrev_b32 v%d, 4, v%d" % (a, a))
        k.I("v_lshrrev_b32 v%d, 3, v%d" % (a + 1, vI))
        k.I("v_lshl_add_u32 v%d, v%d, 9, v%d" % (a, a + 1, a))
        k.I("v_add_u32 v%d, 4096, v%d" % (a + 1, a))
        self.stats_txt = []
        for n in range(7):
            off = " offset:%d" % ((n & 3) * 1024) if n & 3 else ""
            txt = "buffer_load_dwordx4 %s, v%d, %s, s%d offen%s sc1" % (V(self.ST + 4 * n, 4), a + (n >> 2), srd(S_WS), sBase, off)
            self.stats_txt.append(txt)
            k.vmem(txt, tag="stats" if n == 6 else None)

    def normalize_publish(self, ring):
        k = self.k
        acc, ST = accA, self.ST
        self.stamp(3)
        k.wait(vm="stats")
        chk, rt = k.newlabel("chk"), k.newlabel("retry")
        k.label(chk)
        k.I("v_xor_b32 v%d, s%d, v%d" % (vTmpA, sTag0, ST + 2))
        k.I("v_xor_b32 v%d, s%d, v%d" % (vTmpB, sTag1, ST + 3))
        for n in range(1, 7):
            k.I("v_bitop3_b32 v%d, v%d, s%d, v%d bitop3:0xbe" % (vTmpA, ST + 4 * n + 2, sTag0, vTmpA))
            k.I("v_bitop3_b32 v%d, v%d, s%d, v%d bitop3:0xbe" % (vTmpB, ST + 4 * n + 3, sTag1, vTmpB))
        k.I("v_or_b32 v%d, v%d, v%d" % (vTmpA, vTmpA, vTmpB))
        k.I("v_cmp_ne_u32 vcc, 0, v%d" % vTmpA)
        k.I("s_cbranch_vccnz %s" % rt)
        self.retry_tail(rt, chk, self.stats_txt)
        self.stamp(4)
        for (d, s) in ((0, 1), (2, 3), (4, 5), (0, 2), (4, 6), (0, 4)):
            k.I("v_pk_add_f32 %s, %s, %s" % (V(ST + 4 * d, 2), V(ST + 4 * d, 2), V(ST + 4 * s, 2)))
        k.I("v_add_f32_dpp v%d, v%d, v%d row_ror:8 row_mask:0xf bank_mask:0xf" % (ST, ST, ST))
        k.I("v_add_f32_dpp v%d, v%d, v%d row_ror:8 row_mask:0xf bank_mask:0xf" % (ST + 1, ST + 1, ST + 1))
        mean, var, rs, nm = ST + 4, ST + 5, ST + 6, ST + 7
        k.I("v_mul_f32 v%d, 0x%x, v%d" % (mean, f2u(1.0 / 896), ST))
        k.I("v_mul_f32 v%d, 0x%x, v%d" % (var, f2u(1.0 / 896), ST + 1))
        k.I("v_fma_f32 v%d, -v%d, v%d, v%d" % (var, mean, mean, var))
        k.I("v_max_f32 v%d, 0, v%d" % (var, var))
        k.I("v_add_f32 v%d, 0x%x, v%d" % (var, f2u(1e-5), var))
        k.I("v_rsq_f32 v%d, v%d" % (rs, var))
        k.I("v_mul_f32_e64 v%d, -v%d, v%d" % (nm, mean, rs))
        R, NM = vT, vT + 8
        for q in range(8):
            k.I("v_mov_b32_dpp v%d, v%d row_newbcast:%d row_mask:0xf bank_mask:0xf" % (R + q, rs, q))
        for q in range(8):
            k.I("v_mov_b32_dpp v%d, v%d row_newbcast:%d row_mask:0xf bank_mask:0xf" % (NM + q, nm, q))
        ring.pace()
        for cb in range(4):
            for b in range(2):
                for h in range(2):
                    y = acc + (b * 4 + cb) * 4 + 2 * h
                    k.I("v_pk_fma_f32 %s, %s, %s, %s" % (V(y, 2), V(y, 2), V(R + 4 * b + 2 * h, 2), V(NM + 4 * b + 2 * h, 2)))
        P = ST + 8
        self.pack_S(acc, P)
        k.I("s_lshl_b32 s%d, s%d, 18" % (sT0, sR))
        k.I("s_lshl_b32 s%d, s%d, 11" % (sT1, sPart))
        k.I("s_add_u32 s%d, s%d, s%d" % (sT0, sT0, sT1))
        k.I("s_add_u32 s%d, s%d, %d" % (sT0, sT0, WS_Z2N))
        k.I("s_add_u32 s%d, s%d, %d" % (sT1, sT0, 131072))
        for cb in range(4):
            off = " offset:1024" if cb & 1 else ""
            k.vmem("buffer_store_dwordx4 %s, v%d, %s, s%d offen%s sc1" % (V(P + cb * 4, 4), vL16, srd(S_WS), sT0 + (cb >> 1), off),
                   tag="z2n_st" if cb == 3 else None)
        self.stamp(5)

    def z2n_flag(self):
        k = self.k
        k.I("s_lshl_b32 s%d, s%d, 9" % (sT0, sR))
        k.I("s_lshl_b32 s%d, s%d, 3" % (sT1, sPart))
        k.I("s_add_u32 s%d, s%d, s%d" % (sT0, sT0, sT1))
        k.I("s_add_u32 s%d, s%d, %d" % (sT0, sT0, WS_FZ))
        self.flag_store("s%d" % sT0, "z2n_st")

    def epi_kv(self, ring, accK, accV, pk=None):
        k = self.k
        if pk is None:
            self.phi(ring, accK)
            pk = vT + 8
            self.pack_S(accK, pk)
        pv = vT + 24
        self.pack_S(accV, pv)
        ind = vT + 40
        D = accK
        k.I("v_mov_b32 v%d, 0x3f803f80" % (vT + 44))
        for cb in range(4):
            k.I("v_cmp_eq_u32 vcc, %d, v%d" % (cb, vI))
            for q in range(4):
                k.I("v_cndmask_b32 v%d, v%d, v%d, vcc" % (ind + q + (cb & 1) * 8, vZero, vT + 44))
            k.I("v_mfma_f32_16x16x32_bf16 %s, %s, %s, 0" % (V(D + cb * 4, 4), V(pk + cb * 4, 4), V(pv + cb * 4, 4)))
            k.I("v_mfma_f32_16x16x32_bf16 %s, %s, %s, %s" % (V(D + 16, 4), V(pk + cb * 4, 4), V(ind + (cb & 1) * 8, 4), "0" if cb == 0 else V(D + 16, 4)))
        k.I("s_lshl_b32 s%d, s%d, 18" % (sT0, sJJ))
        k.I("s_lshl_b32 s%d, s%d, 10" % (sT1, sPart))
        k.I("s_add_u32 s%d, s%d, s%d" % (sT0, sT0, sT1))
        k.I("s_add_u32 s%d, s%d, %d" % (sT0, sT0, WS_KVP))
        za = vT + 45
        k.I("v_lshl_add_u32 v%d, v%d, 2, v%d" % (za, vI, vG))
        k.I("v_lshlrev_b32 v%d, 4, v%d" % (za, za))
        k.I("v_cmp_gt_u32 vcc, 4, v%d" % vI)
        k.I("v_mov_b32 v%d, 0x%x" % (za + 1, WS_SIZE))
        k.I("v_cndmask_b32 v%d, v%d, v%d, vcc" % (za, za + 1, za))
        for cb in range(4):
            k.vmem("buffer_store_dwordx4 %s, v%d, %s, s%d offen sc1" % (V(D + cb * 4, 4), vL16, srd(S_WS), sT0))
            if cb < 3:
                k.I("s_add_u32 s%d, s%d, 65536" % (sT0, sT0))
        k.I("s_lshl_b32 s%d, s%d, 14" % (sT0, sJJ))
        k.I("s_lshl_b32 s%d, s%d, 8" % (sT1, sPart))
        k.I("s_add_u32 s%d, s%d, s%d" % (sT0, sT0, sT1))
        k.I("s_add_u32 s%d, s%d, %d" % (sT0, sT0, WS_ZP))
        k.vmem("buffer_store_dwordx4 %s, v%d, %s, s%d offen sc1" % (V(D + 16, 4), za, srd(S_WS), sT0), tag="pub_st")
        k.I("s_lshl_b32 s%d, s%d, 9" % (sFlagOff, sJJ))
        k.I("s_lshl_b32 s%d, s%d, 3" % (sT1, sPart))
        k.I("s_add_u32 s%d, s%d, s%d" % (sFlagOff, sFlagOff, sT1))
        k.I("s_add_u32 s%d, s%d, %d" % (sFlagOff, sFlagOff, WS_FKV))

    def epi_z1(self, ring, acc, half):
        k = self.k
        self.gelu(ring, acc)
        P = vT + 8
        self.pack_F(acc, P)
        k.I("s_mul_i32 s%d, s%d, %d" % (sT0, sPart, 2 * 28 * 1024))
        k.I("s_lshl_b32 s%d, s%d, 12" % (sT1, sJJ))
        k.I("s_add_u32 s%d, s%d, s%d" % (sT0, sT0, sT1))
        k.I("s_add_u32 s%d, s%d, %d" % (sT0, sT0, WS_Z1 + half * 2048))
        k.I("s_add_u32 s%d, s%d, %d" % (sT1, sT0, 28 * 1024))
        for b in range(2):
            for pr in range(2):
                off = " offset:1024" if pr else ""
                k.vmem("buffer_store_dwordx4 %s, v%d, %s, s%d offen%s sc1" % (V(P + b * 8 + pr * 4, 4), vL16, srd(S_WS), sT0 + b, off),
                       tag="pub_st")
        if half == 1:
            k.I("s_lshl_b32 s%d, s%d, 3" % (sFlagOff, sT128))
            k.I("s_add_u32 s%d, s%d, s%d" % (sFlagOff, sFlagOff, sJJ))
            k.I("s_lshl_b32 s%d, s%d, 7" % (sFlagOff, sFlagOff))
            k.I("s_lshl_b32 s%d, s%d, 3" % (sT1, sW))
            k.I("s_add_u32 s%d, s%d, s%d" % (sFlagOff, sFlagOff, sT1))
            k.I("s_add_u32 s%d, s%d, %d" % (sFlagOff, sFlagOff, WS_FZ1))

    @staticmethod
    def stream(lines, main):
        ch = []
        for c in range(4):
            ch += [("x", 2 * c, None), ("W:0", c, lines[0]), ("x", 2 * c + 1, None)]
        for li in range(1, len(lines)):
            ch += [("W:%d" % li, c, lines[li]) for c in range(4)]
        if main:
            ch += [("sp", c, None) for c in range(16)]
        ch += [("wo", c, None) for c in range(4)]
        ch += [("wout", c, None) for c in range(7)]
        return ch

    def start_role(self, lines, main):
        ring = Ring(self.k, self.opt, self.stream(lines, main))
        ring.issue(12)
        self.code_prefetch()
        self.prologue2()
        ring.issue(4)
        self.stamp(0)
        return ring

    def role_main(self, ab):
        k = self.k
        z2 = ("win", sR, 128, 1792)
        if ab == 0:
            wl = [z2, ("qkv", sJJ, 128, 1024), ("qkv", sJJ, 128, 2048)]
        else:
            wl = [z2, ("win", sJJ, 256, 0), ("win", sJJ, 256, 128)]
        ring = self.start_role(wl, True)
        ring.limit = 20 + 16
        o = "S" if ab == 0 else "F"

        def epi3():
            self.stamp(6)
            if ab == 0:
                self.epi_kv(ring, accB, accC)
            else:
                self.epi_z1(ring, accB, 0)
                self.epi_z1(ring, accC, 1)
        lines = [dict(orient="S", acc=accA, epi=lambda: self.epi_z2_stats(ring)),
                 dict(orient=o, acc=accB, epi=lambda: self.normalize_publish(ring), hooks={11: self.stats_issue}),
                 dict(orient=o, acc=accC, epi=epi3, hooks={6: self.z2n_flag})]
        self.run_lines(ring, lines)
        ring.flush()
        return ring

    def phase2(self, ring):
        k, D = self.k, self.opt.zdepth
        Zs = 128
        acc = accA
        Bq = accB
        Z1 = accC
        FL = vT
        self.stamp(7)
        k.I("s_lshr_b32 s%d, s%d, 1" % (sT0, sW))
        k.I("s_lshl_b32 s%d, s%d, 1" % (sT1, sJJ))
        k.I("s_add_u32 s%d, s%d, s%d" % (sT0, sT0, sT1))
        k.I("s_lshl_b32 s%d, s%d, 9" % (sT0, sT0))
        k.I("s_add_u32 s%d, s%d, %d" % (sT2, sT0, WS_FZ))
        txt = self.poll_issue(FL, vL8, "s%d" % sT2, 0, "fz")
        t = vT + 2
        k.I("v_lshrrev_b32 v%d, 2, v%d" % (t, vI))
        k.I("v_and_b32 v%d, 3, v%d" % (t + 1, vI))
        k.I("v_lshl_add_u32 v%d, v%d, 3, v%d" % (t, t, t + 1))
        k.I("v_lshlrev_b32 v%d, 1, v%d" % (t, t))
        k.I("s_lshl_b32 s%d, s%d, 7" % (sT0, sT64))
        for tb in range(4):
            o = (32 * (tb >> 1) + 4 * (tb & 1)) * 2
            k.vmem("buffer_load_ushort v%d, v%d, %s, s%d offen%s" % (Bq + tb * 4, t, srd(S_BSP), sT0, " offset:%d" % o if o else ""), tag="bias")
        k.I("s_lshl_b32 s%d, s%d, 2" % (sBase, sJJ))
        k.I("s_add_u32 s%d, s%d, s%d" % (sBase, sBase, sW))
        k.I("s_lshl_b32 s%d, s%d, 17" % (sBase, sBase))
        k.I("s_add_u32 s%d, s%d, %d" % (sBase, sBase, WS_Z2N))
        self.poll_check(FL, txt, "fz")
        self.stamp(8)

        def zload(n, fb):
            if (n & 3) == 0 and fb == 0:
                k.I("s_add_u32 s%d, s%d, %d" % (sZoff, sRot2, n >> 2))
                k.I("s_and_b32 s%d, s%d, 15" % (sZoff, sZoff))
                k.I("s_lshl_b32 s%d, s%d, 13" % (sZoff, sZoff))
                k.I("s_add_u32 s%d, s%d, s%d" % (sZoff, sZoff, sBase))
            o = (n & 3) * 2048 + fb * 1024
            vo = vL16b if o >= 4096 else vL16
            o &= 4095
            k.vmem("buffer_load_dwordx4 %s, v%d, %s, s%d offen%s sc1" % (A(Zs + ((n % D) * 2 + fb) * 4, 4), vo, srd(S_WS), sZoff, " offset:%d" % o if o else ""),
                   tag=("z", n, fb))

        def aread(n, tb):
            key = ("sp", n >> 2)
            ks = n & 3
            bank, imm = ring.addr(key, tb * 4096 + (ks >> 1) * 2048)
            k.ds("ds_read_b128 %s, v%d offset:%d" % (V(vWf + (n & 1) * 16 + tb * 4, 4), vRd + bank * 2 + (ks & 1), imm), tag=("af", n & 1, tb))

        for n in range(D - 1):
            zload(n, 0)
            zload(n, 1)
        self.flag_store("s%d" % sFlagOff, "pub_st")
        k.wait(vm="bias")
        for tb in range(4):
            k.I("v_lshlrev_b32 v%d, 16, v%d" % (Bq + tb * 4, Bq + tb * 4))
        for tb in range(4):
            for q in range(1, 4):
                k.I("v_mov_b32 v%d, v%d" % (Bq + tb * 4 + q, Bq + tb * 4))
        ring.sync(need=("sp", 0))
        for tb in range(4):
            aread(0, tb)
        hooks = {}

        def z1_poll():
            k.I("s_lshl_b32 s%d, s%d, 3" % (sT2, sT128))
            k.I("s_add_u32 s%d, s%d, s%d" % (sT2, sT2, sJJ))
            k.I("s_lshl_b32 s%d, s%d, 7" % (sT2, sT2))
            k.I("s_add_u32 s%d, s%d, %d" % (sT2, sT2, WS_FZ1))
            k.I("v_and_b32 v%d, 24, v%d" % (FL + 2, vL8))
            self.z1txt = self.poll_issue(FL, FL + 2, "s%d" % sT2, 0, "fz1")

        def z1_load():
            self.poll_check(FL, self.z1txt, "fz1")
            k.I("s_mul_i32 s%d, s%d, %d" % (sT0, sT64, 4 * 28 * 1024))
            k.I("s_lshl_b32 s%d, s%d, 2" % (sT1, sJJ))
            k.I("s_add_u32 s%d, s%d, s%d" % (sT1, sT1, sW))
            k.I("s_lshl_b32 s%d, s%d, 10" % (sT1, sT1))
            k.I("s_add_u32 s%d, s%d, s%d" % (sT0, sT0, sT1))
            k.I("s_add_u32 s%d, s%d, %d" % (sT0, sT0, WS_Z1))
            for tb in range(4):
                k.vmem("buffer_load_dwordx4 %s, v%d, %s, s%d offen sc1" % (V(Z1 + tb * 4, 4), vL16, srd(S_WS), sT0), tag="z1")
                if tb < 3:
                    k.I("s_add_u32 s%d, s%d, %d" % (sT0, sT0, 28 * 1024))

        def z1_unpack(tb):
            k.wait(vm="z1")
            for q in range(4):
                fb, h = q >> 1, q & 1
                d = accB + (fb * 4 + tb) * 4 + 2 * h
                k.I("v_lshlrev_b32 v%d, 16, v%d" % (d, Z1 + tb * 4 + q))
                k.I("v_and_b32 v%d, 0xffff0000, v%d" % (d + 1, Z1 + tb * 4 + q))
        hooks[28] = z1_poll
        hooks[38] = z1_load
        for tb in range(4):
            hooks[49 + tb] = (lambda tb=tb: z1_unpack(tb))
        hooks[64 - D + 1] = lambda: setattr(ring, "limit", 36 + 4)
        for n in range(64):
            boundary = (n & 3) == 3
            if n in hooks:
                hooks[n]()
            k.wait(vm=("z", n, 1))
            rd = 0
            for m in range(8):
                tb, fb = m >> 1, m & 1
                if boundary and m == 4:
                    ring.sync(need=("sp", (n + 1) >> 2) if n < 63 else None, release=[("sp", n >> 2)])
                if fb == 0:
                    k.wait(lg=("af", n & 1, tb))
                d = acc + (fb * 4 + tb) * 4
                k.I("v_mfma_f32_16x16x32_bf16 %s, %s, %s, %s" % (V(d, 4), A(Zs + ((n % D) * 2 + fb) * 4, 4), V(vWf + (n & 1) * 16 + tb * 4, 4),
                                                                V(Bq + tb * 4, 4) if n == 0 else V(d, 4)))
                if n < 63:
                    if (boundary and m >= 4) or (not boundary and (m & 1) == 0):
                        aread(n + 1, rd)
                        rd += 1
                nn = n + D - 1
                if m in (1, 3) and nn < 64:
                    zload(nn, m >> 1)
                if m == 5 or (nn >= 64 and m in (1, 3)):
                    ring.issue(1)
        self.stamp(9)
        P = accC
        for fb in range(2):
            for tb in range(4):
                for h in range(2):
                    d = acc + (fb * 4 + tb) * 4 + 2 * h
                    k.I("v_pk_mul_f32 %s, %s, %s" % (V(d, 2), V(d, 2), V(accB + (fb * 4 + tb) * 4 + 2 * h, 2)))
        k.I("s_mul_i32 s%d, s%d, %d" % (sT0, sT64, 4 * 44 * 1024))
        k.I("s_lshl_b32 s%d, s%d, 2" % (sT1, sJJ))
        k.I("s_add_u32 s%d, s%d, s%d" % (sT1, sT1, sW))
        k.I("s_lshl_b32 s%d, s%d, 3" % (sFlagOff, sT1))
        k.I("s_lshl_b32 s%d, s%d, 10" % (sT1, sT1))
        k.I("s_add_u32 s%d, s%d, s%d" % (sT0, sT0, sT1))
        k.I("s_add_u32 s%d, s%d, %d" % (sT0, sT0, WS_A3 + 16 * 1024))
        for tb in range(4):
            for fb in range(2):
                for h in range(2):
                    d = acc + (fb * 4 + tb) * 4 + 2 * h
                    k.I("v_cvt_pk_bf16_f32 v%d, v%d, v%d" % (P + tb * 4 + fb * 2 + h, d, d + 1))
            k.vmem("buffer_store_dwordx4 %s, v%d, %s, s%d offen sc1" % (V(P + tb * 4, 4), vL16, srd(S_WS), sT0), tag="pub_st")
            if tb < 3:
                k.I("s_add_u32 s%d, s%d, %d" % (sT0, sT0, 44 * 1024))
        k.I("s_lshl_b32 s%d, s%d, 8" % (sT1, sT64))
        k.I("s_add_u32 s%d, s%d, s%d" % (sFlagOff, sFlagOff, sT1))
        k.I("s_add_u32 s%d, s%d, %d" % (sFlagOff, sFlagOff, WS_FH))

    def phase3(self, ring):
        k = self.k
        FL = vT
        accO, accH = accA, accA + 16
        ring.limit = len(ring.chunks)
        k.I("s_lshl_b32 s%d, s%d, 8" % (sT2, sT64))
        k.I("s_add_u32 s%d, s%d, %d" % (sT2, sT2, WS_FH))
        k.I("v_and_b32 v%d, 0xf8, v%d" % (FL + 2, vL8))
        ring.issue(6)
        self.flag_store("s%d" % sFlagOff, "pub_st")
        self.stamp(10)
        txt = self.poll_issue(FL, FL + 2, "s%d" % sT2, 0, "fo")
        k.I("s_lshl_b32 s%d, s%d, 2" % (sBase, sT64))
        k.I("s_add_u32 s%d, s%d, s%d" % (sBase, sBase, sW))
        k.I("s_lshl_b32 s%d, s%d, 6" % (sT0, sBase))
        k.I("s_mul_i32 s%d, s%d, %d" % (sBase, sBase, 44 * 1024))
        k.I("s_add_u32 s%d, s%d, %d" % (sBase, sBase, WS_A3))
        k.I("s_add_u32 s%d, s%d, %d" % (sT0, sT0, WS_GATE))
        ring.issue(6)
        self.poll_check(FL, txt, "fo", mask_lo=0xf0000000)
        self.stamp(11)
        gt = vT + 4
        k.I("v_lshlrev_b32 v%d, 2, v%d" % (gt + 1, vI))
        k.vmem("buffer_load_dword v%d, v%d, %s, s%d offen sc1" % (gt, gt + 1, srd(S_WS), sT0), tag="gate")

        def aload(part, c):
            if part == 0:
                k.I("s_add_u32 s%d, s%d, %d" % (sZoff, sRot3a, c))
                k.I("s_and_b32 s%d, s%d, 3" % (sZoff, sZoff))
            else:
                rot7(k, sZoff, c)
                k.I("s_add_u32 s%d, s%d, 4" % (sZoff, sZoff))
            k.I("s_lshl_b32 s%d, s%d, 12" % (sZoff, sZoff))
            k.I("s_add_u32 s%d, s%d, s%d" % (sZoff, sZoff, sBase))
            for q in range(4):
                n = (part * 4 + c) * 4 + q
                k.vmem("buffer_load_dwordx4 %s, v%d, %s, s%d offen%s sc1" % (A(n * 4, 4), vL16, srd(S_WS), sZoff, " offset:%d" % (q * 1024) if q else ""),
                       tag=("a3", n))
        for c in range(4):
            aload(0, c)
        ring.flush()
        ckey = lambda n: ("wo", n >> 2) if n < 16 else ("wout", (n - 16) >> 2)
        ring.sync(need=ckey(0))
        for q in range(8):
            self.tr_read(ring, ckey(0), 0, q, 0)
        for n in range(44):
            buf = n & 1
            boundary = (n & 3) == 3
            if n == 12:
                self.htxt = self.poll_issue(FL, FL + 2, "s%d" % sT2, 0, "fh")
            if n == 16:
                self.stamp(12)
                self.poll_check(FL, self.htxt, "fh", mask_lo=0x0fffffff)
                self.stamp(13)
                for c in range(7):
                    aload(1, c)
            k.wait(vm=("a3", n))
            acc = accO if n < 16 else accH
            rd = 0
            for nb in range(4):
                if boundary and nb == 2:
                    ring.sync(need=ckey(n + 1) if n < 43 else None, release=[ckey(n)])
                    ring.flush()
                k.wait(lg=("wf", buf, 2 * nb + 1))
                d = acc + nb * 4
                k.I("v_mfma_f32_16x16x32_bf16 %s, %s, %s, %s" % (V(d, 4), V(vWf + buf * 16 + nb * 4, 4), A(n * 4, 4), "0" if n in (0, 16) else V(d, 4)))
                if n < 43:
                    cnt = (0 if nb < 2 else 4) if boundary else 2
                    for _ in range(cnt):
                        self.tr_read(ring, ckey(n + 1), (n + 1) & 3, rd, buf ^ 1)
                        rd += 1
        self.stamp(14)
        k.wait(vm="gate")
        k.I("v_mov_b32 v%d, v%d" % (gt + 1, gt))
        for q in range(8):
            k.I("v_pk_add_f32 %s, %s, %s neg_lo:[0,1] neg_hi:[0,1]" % (V(accO + 2 * q, 2), V(accO + 2 * q, 2), V(accH + 2 * q, 2)))
        for q in range(8):
            k.I("v_pk_fma_f32 %s, %s, %s, %s" % (V(accO + 2 * q, 2), V(accO + 2 * q, 2), V(gt, 2), V(accH + 2 * q, 2)))
        P = accB
        for q in range(8):
            k.I("v_cvt_pk_bf16_f32 v%d, v%d, v%d" % (P + q, accO + 2 * q, accO + 2 * q + 1))
        wa, ra, ga = vT + 8, vT + 9, vT + 10
        k.I("v_mul_u32_u24 v%d, 144, v%d" % (wa, vI))
        k.I("v_lshl_add_u32 v%d, v%d, 3, v%d" % (wa, vG, wa))
        k.I("v_add_u32 v%d, s%d, v%d" % (wa, sW4k, wa))
        slot = ring.free[0] * 16384
        k.I("v_add_u32 v%d, %d, v%d" % (wa, slot, wa))
        for nb in range(4):
            k.ds("ds_write_b64 v%d, %s offset:%d" % (wa, V(P + 2 * nb, 2), nb * 32))
        u, p = vT + 11, vT + 12
        k.I("v_lshrrev_b32 v%d, 3, v%d" % (u, vLane))
        k.I("v_and_b32 v%d, 7, v%d" % (p, vLane))
        k.I("v_mul_u32_u24 v%d, 144, v%d" % (ra, u))
        k.I("v_lshl_add_u32 v%d, v%d, 4, v%d" % (ra, p, ra))
        k.I("v_add_u32 v%d, s%d, v%d" % (ra, sW4k, ra))
        k.I("v_add_u32 v%d, %d, v%d" % (ra, slot, ra))
        k.I("v_lshrrev_b32 v%d, 2, v%d" % (ga, u))
        k.I("v_and_b32 v%d, 3, v%d" % (u, u))
        k.I("v_lshl_add_u32 v%d, v%d, 3, v%d" % (ga, ga, u))
        k.I("v_lshlrev_b32 v%d, 10, v%d" % (ga, ga))
        k.I("v_lshl_add_u32 v%d, v%d, 4, v%d" % (ga, p, ga))
        k.I("s_lshl_b32 s%d, s%d, 6" % (sT0, sT64))
        k.I("s_lshr_b32 s%d, s%d, 1" % (sT1, sW))
        k.I("s_lshl_b32 s%d, s%d, 5" % (sT1, sT1))
        k.I("s_add_u32 s%d, s%d, s%d" % (sT0, sT0, sT1))
        k.I("s_and_b32 s%d, s%d, 1" % (sT1, sW))
        k.I("s_lshl_b32 s%d, s%d, 2" % (sT1, sT1))
        k.I("s_add_u32 s%d, s%d, s%d" % (sT0, sT0, sT1))
        k.I("s_lshl_b32 s%d, s%d, 10" % (sT0, sT0))
        k.I("s_lshl_b32 s%d, s%d, 7" % (sT1, sJJ))
        k.I("s_add_u32 s%d, s%d, s%d" % (sT0, sT0, sT1))
        k.I("s_add_u32 s%d, s%d, %d" % (sT1, sT0, 16 * 1024))
        k.wait(lg="all")
        for j in range(2):
            k.ds("ds_read_b128 %s, v%d offset:%d" % (V(P + 8 + 4 * j, 4), ra, j * 8 * 144), tag=("o", j))
        for j in range(2):
            k.wait(lg=("o", j))
            k.vmem("buffer_store_dwordx4 %s, v%d, %s, s%d offen" % (V(P + 8 + 4 * j, 4), ga, srd(S_OUT), sT0 + j))
        self.stamp(15)
        self.dump_stamps()

    def role_spare(self, s):
        k = self.k
        PQ = [100, 116, 164, 180, 212]
        if s == 0:
            wl = [("qkv", None, 0, 1024 + 7 * 128), ("qkv", None, 0, 2048 + 7 * 128)] + [("qkv", None, 0, L * 128) for L in range(3)]
            qlines = [0, 1, 2]
        else:
            wl = [("qkv", None, 0, L * 128) for L in range(3, 8)]
            qlines = [3, 4, 5, 6, 7]
        ring = self.start_role(wl, False)
        ring.limit = len(ring.chunks) - 2
        PK = 228

        def epi_q(n):
            self.phi(ring, accA)
            self.pack_F(accA, PQ[n])

        def epi_k():
            self.phi(ring, accA)
            self.pack_S(accA, PK)

        def epi_v():
            self.epi_kv_spare(ring, PK)

        def gate():
            gw, bc, D = vT + 8, vT + 12, vT + 20
            k.wait(vm="gw")
            for n in range(16):
                bb = bc + (n & 1) * 4
                for q in range(4):
                    k.I("v_mov_b32_dpp v%d, v%d row_newbcast:%d row_mask:0xf bank_mask:0xf" % (bb + q, gw + q, n))
                for b in range(2):
                    k.I("v_mfma_f32_16x16x32_bf16 %s, %s, %s, %s" % (V(D + 4 * b, 4), V(bb, 4), A((n * 2 + b) * 4, 4), "0" if n == 0 else V(D + 4 * b, 4)))
                ring.pace()
            for b in range(2):
                k.I("v_mul_f32_e64 v%d, -v%d, v%d" % (D + 4 * b, D + 4 * b, vL2e))
            for b in range(2):
                k.I("v_exp_f32 v%d, v%d" % (D + 4 * b, D + 4 * b))
            for b in range(2):
                k.I("v_add_f32 v%d, 1.0, v%d" % (D + 4 * b, D + 4 * b))
            for b in range(2):
                k.I("v_rcp_f32 v%d, v%d" % (D + 4 * b, D + 4 * b))
            k.I("v_lshlrev_b32 v%d, 2, v%d" % (gw, vI))
            k.I("s_lshl_b32 s%d, s%d, 7" % (sT0, sPart))
            k.I("s_add_u32 s%d, s%d, %d" % (sT0, sT0, WS_GATE))
            for b in range(2):
                k.vmem("buffer_store_dword v%d, v%d, %s, s%d offen%s sc1" % (D + 4 * b, gw, srd(S_WS), sT0, " offset:64" if b else ""), tag="pub_st")

        def gw_load():
            gw = vT + 8
            t = vT + 30
            k.I("s_lshl_b32 s%d, s%d, 2" % (sT0, sRot1))
            k.I("v_add_u32 v%d, s%d, v%d" % (t, sT0, vI))
            k.I("v_and_b32 v%d, 15, v%d" % (t, t))
            k.I("v_lshl_add_u32 v%d, v%d, 2, v%d" % (t, t, vG))
            k.I("v_lshlrev_b32 v%d, 4, v%d" % (t, t))
            k.vmem("buffer_load_dwordx4 %s, v%d, %s, 0 offen" % (V(gw, 4), t, srd(S_GW)), tag="gw")

        if s == 0:
            lines = [dict(orient="S", acc=accA, epi=epi_k),
                     dict(orient="S", acc=accA, epi=epi_v),
                     dict(orient="F", acc=accA, epi=lambda: epi_q(0), hooks={6: lambda: self.flag_store("s%d" % sFlagOff, "pub_st")}),
                     dict(orient="F", acc=accA, epi=lambda: epi_q(1)),
                     dict(orient="F", acc=accA, epi=lambda: epi_q(2))]
        else:
            lines = [dict(orient="F", acc=accA, epi=lambda: (gate(), epi_q(0)), hooks={8: gw_load})]
            lines += [dict(orient="F", acc=accA, epi=(lambda n=n: epi_q(n))) for n in range(1, 5)]
        self.run_lines(ring, lines)
        self.stamp(6)
        FL = vT
        k.I("s_lshr_b32 s%d, s%d, 2" % (sT0, sT64))
        k.I("s_lshl_b32 s%d, s%d, 9" % (sT2, sT0))
        k.I("s_add_u32 s%d, s%d, %d" % (sT2, sT2, WS_FKV))
        txt = self.poll_issue(FL, vL8, "s%d" % sT2, 0, "fkv")
        self.poll_check(FL, txt, "fkv")
        self.stamp(7)
        KP = [accA + 4 * n for n in range(8)] + [vWf + 4 * n for n in range(8)]
        k.I("s_lshl_b32 s%d, s%d, 16" % (sT1, sT64))
        k.I("s_lshl_b32 s%d, s%d, 14" % (sT2, sW))
        k.I("s_add_u32 s%d, s%d, s%d" % (sT1, sT1, sT2))
        k.I("s_add_u32 s%d, s%d, %d" % (sT1, sT1, WS_KVP))
        for n in range(16):
            if n and (n & 3) == 0:
                k.I("s_add_u32 s%d, s%d, 4096" % (sT1, sT1))
            k.vmem("buffer_load_dwordx4 %s, v%d, %s, s%d offen%s sc1" % (V(KP[n], 4), vL16, srd(S_WS), sT1, " offset:%d" % ((n & 3) * 1024) if n & 3 else ""),
                   tag=("kp", n))
        ZR, za = vT + 4, vT + 2
        k.I("s_lshl_b32 s%d, s%d, 14" % (sT0, sT0))
        k.I("s_add_u32 s%d, s%d, s%d" % (sT0, sT0, sW4k))
        k.I("s_and_b32 s%d, s%d, 3" % (sT2, sT64))
        k.I("s_lshl_b32 s%d, s%d, 6" % (sT2, sT2))
        k.I("s_add_u32 s%d, s%d, s%d" % (sT0, sT0, sT2))
        k.I("s_add_u32 s%d, s%d, %d" % (sT0, sT0, WS_ZP))
        k.I("v_lshlrev_b32 v%d, 4, v%d" % (za, vG))
        k.I("v_lshl_add_u32 v%d, v%d, 8, v%d" % (za, vI, za))
        k.vmem("buffer_load_dwordx4 %s, v%d, %s, s%d offen sc1" % (V(ZR, 4), za, srd(S_WS), sT0), tag="zp")
        for n in range(1, 16):
            k.wait(vm=("kp", n))
            for h in range(2):
                k.I("v_pk_add_f32 %s, %s, %s" % (V(KP[0] + 2 * h, 2), V(KP[0] + 2 * h, 2), V(KP[n] + 2 * h, 2)))
        k.wait(vm="zp")
        for ctl in ("row_ror:8", "row_ror:4", "row_ror:2", "row_ror:1"):
            for q in range(4):
                k.I("v_add_f32_dpp v%d, v%d, v%d %s row_mask:0xf bank_mask:0xf" % (ZR + q, ZR + q, ZR + q, ctl))
        slot = ring.free[-1] * 16384
        la = vT + 3
        k.I("v_add_u32 v%d, %d, v%d" % (la, slot, vL16))
        k.I("v_add_u32 v%d, s%d, v%d" % (za, sW4k, la))
        k.ds("ds_write_b128 v%d, %s" % (za, V(KP[0], 4)))
        k.ds("ds_write_b128 v%d, %s offset:1024" % (za, V(ZR, 4)))
        k.wait(lg="all")
        k.I("s_barrier")
        for w in range(4):
            k.ds("ds_read_b128 %s, v%d offset:%d" % (V(accA + 8 * w, 4), la, w * 4096))
            k.ds("ds_read_b128 %s, v%d offset:%d" % (V(accA + 8 * w + 4, 4), la, w * 4096 + 1024))
        k.wait(lg="all")
        k.I("s_barrier")
        for w in range(1, 4):
            for h in range(4):
                k.I("v_pk_add_f32 %s, %s, %s" % (V(accA + 2 * h, 2), V(accA + 2 * h, 2), V(accA + 8 * w + 2 * h, 2)))
        for h in range(4):
            k.I("v_cvt_pk_bf16_f32 v%d, v%d, v%d" % (accA + 8 + h, accA + 2 * h, accA + 2 * h + 1))
        k.I("s_lshl_b32 s%d, s%d, 10" % (sT0, sT64))
        k.I("s_add_u32 s%d, s%d, %d" % (sT0, sT0, WS_KVF))
        k.vmem("buffer_store_dwordx4 %s, v%d, %s, s%d offen sc1" % (V(accA + 8, 4), vL16, srd(S_WS), sT0), tag="kvf_st")
        k.I("s_lshl_b32 s%d, s%d, 3" % (sT0, sT64))
        k.I("s_add_u32 s%d, s%d, %d" % (sT0, sT0, WS_FKF))
        self.flag_store("s%d" % sT0, "kvf_st")
        k.I("v_and_b32 v%d, 0xf8, v%d" % (FL + 2, vL8))
        k.I("s_mov_b32 s%d, %d" % (sT2, WS_FKF))
        txt = self.poll_issue(FL, FL + 2, "s%d" % sT2, 0, "fkf")
        self.poll_check(FL, txt, "fkf", mask_lo=(0x00000fff if s == 0 else 0xfffff000))
        self.stamp(8)
        KF = 128
        for n, L in enumerate(qlines):
            k.I("s_mov_b32 s%d, %d" % (sT0, WS_KVF + L * 4096))
            for cb in range(4):
                k.vmem("buffer_load_dwordx4 %s, v%d, %s, s%d offen%s sc1" % (A(KF + (n * 4 + cb) * 4, 4), vL16, srd(S_WS), sT0, " offset:%d" % (cb * 1024) if cb else ""),
                       tag=("kf", n))
        k.I("s_mul_i32 s%d, s%d, %d" % (sBase, sPart, 2 * 44 * 1024))
        k.I("s_add_u32 s%d, s%d, %d" % (sBase, sBase, WS_A3))
        for n, L in enumerate(qlines):
            k.wait(vm=("kf", n))
            NUM, DEN, RC = accA, vWf, 244
            P = 228 if (n & 1) == 0 else vT
            for b in range(2):
                for cb in range(4):
                    q = b * 4 + cb
                    kf = KF + (n * 4 + cb) * 4
                    k.I("v_mfma_f32_16x16x16_bf16 %s, %s, %s, 0" % (V(DEN + q * 4, 4), A(kf + 2, 2), V(PQ[n] + q * 2, 2)))
                    k.I("v_mfma_f32_16x16x16_bf16 %s, %s, %s, 0" % (V(NUM + q * 4, 4), A(kf, 2), V(PQ[n] + q * 2, 2)))
            for q in range(8):
                k.I("v_add_f32 v%d, v%d, v%d" % (RC + q, vEps, DEN + q * 4))
            for q in range(8):
                k.I("v_rcp_f32 v%d, v%d" % (RC + q, RC + q))
            for q in range(8):
                for e in range(4):
                    k.I("v_mul_f32 v%d, v%d, v%d" % (NUM + q * 4 + e, NUM + q * 4 + e, RC + q))
            self.pack_F(NUM, P)
            k.I("s_add_u32 s%d, s%d, %d" % (sT0, sBase, L * 2048))
            k.I("s_add_u32 s%d, s%d, %d" % (sT1, sT0, 44 * 1024))
            for b in range(2):
                for pr in range(2):
                    k.vmem("buffer_store_dwordx4 %s, v%d, %s, s%d offen%s sc1" % (V(P + b * 8 + pr * 4, 4), vL16, srd(S_WS), sT0 + b, " offset:1024" if pr else ""),
                           tag="pub_st")
        k.I("s_lshr_b32 s%d, s%d, 1" % (sFlagOff, sPart))
        k.I("s_lshl_b32 s%d, s%d, 8" % (sFlagOff, sFlagOff))
        k.I("s_and_b32 s%d, s%d, 1" % (sT1, sW))
        k.I("s_lshl_b32 s%d, s%d, 3" % (sT1, sT1))
        k.I("s_add_u32 s%d, s%d, s%d" % (sFlagOff, sFlagOff, sT1))
        k.I("s_add_u32 s%d, s%d, %d" % (sFlagOff, sFlagOff, WS_FH + (28 + 2 * s) * 8))
        self.stamp(9)
        return ring

    def epi_kv_spare(self, ring, pk):
        k = self.k
        for q in range(16):
            k.I("v_mov_b32 v%d, v%d" % (vT + 8 + q, pk + q))
        self.epi_kv(ring, accC, accA, pk=vT + 8)

    def build(self):
        k = self.k
        self.prologue()
        k.I("s_cmp_eq_u32 s%d, 14" % sR)
        k.I("s_cbranch_scc1 L_roleS0")
        k.I("s_cmp_eq_u32 s%d, 15" % sR)
        k.I("s_cbranch_scc1 L_roleS1")
        k.I("s_cmp_eq_u32 s%d, 1" % sAB)
        k.I("s_cbranch_scc1 L_roleB")
        s0 = k.snapshot()
        ra = self.role_main(0)
        k.I("s_nop 7")
        k.I("s_branch L_P2")
        sa = k.snapshot()
        k.label("L_roleB")
        k.restore(s0)
        rb = self.role_main(1)
        k.I("s_nop 7")
        sb = k.snapshot()
        assert ra.state()[:4] == rb.state()[:4], (ra.state(), rb.state())
        k.label("L_P2")
        k.join([sa, sb])
        rb.last_t = -10 ** 9
        self.phase2(rb)
        self.phase3(rb)
        k.I("s_cmp_lg_u32 s2, 0")
        k.I("s_cbranch_scc1 L_end")
        k.vmem("buffer_store_dwordx2 %s, v%d, %s, 0 offen sc1" % (V(vTag, 2), vZero, srd(S_WS)))
        if self.opt.stamps:
            k.I("s_load_dwordx2 s[4:5], s[0:1], 80")
            k.I("s_memrealtime s[8:9]")
            k.I("s_waitcnt lgkmcnt(0)")
            k.I("s_sub_u32 s8, s8, s100")
            k.I("v_mov_b32 v%d, s8" % vT)
            k.vmem("global_store_dword v%d, v%d, s[4:5]" % (vZero, vT))
            for i in range(1, 16):
                k.I("s_sub_u32 s8, s%d, s98" % (sStamp0 + 2 * i))
                k.I("v_mov_b32 v%d, s8" % (vT + i))
                k.vmem("global_store_dword v%d, v%d, s[4:5] offset:%d" % (vZero, vT + i, 4 * i))
        k.I("s_branch L_end")
        snaps, rings = [], []
        for s in range(2):
            k.comment("---------------- role S%d ----------------" % s)
            k.label("L_roleS%d" % s)
            k.restore(s0)
            r = self.role_spare(s)
            r.flush()
            k.I("s_nop 7")
            if s == 0:
                k.I("s_branch L_P3s")
            snaps.append(k.snapshot())
            rings.append(r)
        assert rings[0].state()[:4] == rings[1].state()[:4]
        k.label("L_P3s")
        k.join(snaps)
        self.phase3(rings[1])
        k.label("L_end")
        k.I("s_endpgm")
        k.tail.append("L_code_end:")
        k.tail.append("    s_endpgm")
        return k.text()


HEADER = """; Fused gated_mix(linear attention block, gMLP mixer): one persistent launch, 256 workgroups x 256 threads.
; Generated by gen/gen.py (hand-written generator).
; Kernarg: A_x, A_wqkv, A_wo, B_x, B_w_in, B_w_sp, B_b_sp, B_w_out, gate_w, out, debug, ws
; @launch grid=(256,1,1) block=(256,1,1) lds=163840
.amdgcn_target "amdgcn-amd-amdhsa--gfx950"
.text
.globl %s
.p2align 8
.type %s,@function
%s:
""" % (NAME, NAME, NAME)

FOOTER = """.section .rodata,"a"
.p2align 6
.amdhsa_kernel %s
  .amdhsa_next_free_vgpr 512
  .amdhsa_next_free_sgpr 102
  .amdhsa_accum_offset 256
  .amdhsa_group_segment_fixed_size 0
  .amdhsa_kernarg_size 96
  .amdhsa_user_sgpr_count 2
  .amdhsa_user_sgpr_kernarg_segment_ptr 1
  .amdhsa_system_sgpr_workgroup_id_x 1
.end_amdhsa_kernel
""" % NAME


def generate(**kw):
    opt = Opt()
    for a, b in kw.items():
        assert hasattr(opt, a), a
        setattr(opt, a, b)
    g = Gen(opt)
    body = g.build()
    return HEADER + body + FOOTER


if __name__ == "__main__":
    out = sys.argv[1]
    kw = {}
    for a in sys.argv[2:]:
        key, val = a.split("=")
        try:
            val = int(val)
        except ValueError:
            pass
        kw[key] = val
    open(out, "w").write(generate(**kw))
```

```python
import sys, struct, math
from kb import KB

NAME = "gated_mix__linear_attn_block__mixer_gmlp__prompt_kernel"

WS_E = 0
WS_FZ = 0x1000
WS_FH = 0x3000
WS_FZ1 = 0x5000
WS_FKV = 0xA000
WS_FKF = 0xB000
WS_GATE = 0xC000
WS_STATS = 0x10000
WS_ZP = 0x80000
WS_KVF = 0xA0000
WS_KVP = 0x100000
WS_Z2N = 0x300000
WS_Z1 = 0x680000
WS_A3 = 0xA00000
WS_DBG = 0xF80000
WS_SIZE = 0x1000000

TAG0_INC = 0x9E3779B9
TAG1_INC = 0x7F4A7C15

S_X, S_QKV, S_WO, S_WIN, S_SP, S_BSP, S_WOUT, S_GW, S_OUT, S_WS = 4, 8, 12, 16, 20, 24, 28, 32, 36, 40
sW, sT128, sR, sJJ, sAB, sT64, sTag0, sTag1 = 44, 45, 46, 47, 48, 49, 50, 51
sRot1, sRot2, sRot3a, sRot3b, sW4k, sPart = 52, 53, 54, 55, 56, 57
sDma = 58
sT0, sT1, sT2, sT3 = 59, 60, 61, 62
sZoff = 63
sFlagOff = 64
sBase = 65
sStamp0 = 66


def srd(b):
    return "s[%d:%d]" % (b, b + 3)


vLane, vI, vG = 1, 2, 3
vXo, vWi, vWq, vSp, vW3 = 4, 8, 12, 16, 20
vTr, vRd, vRx = 24, 36, 42
vL16, vL16b = 48, 49
vZero, vL8 = 50, 51
vC1, vC2, vOne, vL2e, vEps = 52, 54, 56, 58, 60
vTmpA, vTmpB = 62, 63
vGr = 64
vTag = 66
accA, accB, vWf, accC, vT = 68, 100, 132, 164, 196


def f2u(x):
    return struct.unpack("<I", struct.pack("<f", x))[0]


def V(b, n=1):
    return "v%d" % b if n == 1 else "v[%d:%d]" % (b, b + n - 1)


def A(b, n=1):
    return "a%d" % b if n == 1 else "a[%d:%d]" % (b, b + n - 1)


class Opt:
    win = "nt"
    stamps = False
    gap = 72
    zdepth = 8
    rot = True
    codepf = True
    spinwg = -1
    spin = 0
    budget = 20000


class Ring:
    NS = 10

    def __init__(self, k, opt, chunks):
        self.k, self.opt = k, opt
        self.chunks = chunks
        self.free = list(range(self.NS))
        self.slot = {}
        self.nxt = 0
        self.sub = 0
        self.last_t = -10 ** 9
        self.limit = len(chunks)
        self.visible = set()

    def state(self):
        return (list(self.free), dict(self.slot), self.nxt, self.sub, set(self.visible))

    def key(self, n):
        c = self.chunks[n]
        return (c[0], c[1])

    def can_issue(self):
        if self.nxt >= min(self.limit, len(self.chunks)):
            return False
        return self.sub > 0 or bool(self.free)

    def issue_one(self):
        k = self.k
        kind, idx, extra = self.chunks[self.nxt]
        key = (kind, idx)
        if self.sub == 0:
            s = self.free.pop(0)
            self.slot[key] = s
            base = kind.split(":")[0]
            if base == "x":
                k.I("s_lshl_b32 s%d, s%d, 8" % (sDma, sRot1))
                k.I("s_add_u32 s%d, s%d, %d" % (sDma, sDma, idx * 128))
                k.I("s_and_b32 s%d, s%d, 1023" % (sDma, sDma))
                k.I("s_lshl_b32 s%d, s%d, 17" % (sT3, sT128))
                k.I("s_add_u32 s%d, s%d, s%d" % (sDma, sDma, sT3))
            elif base == "W":
                mat, mul_reg, mul, add = extra
                stride = 3584 if mat == "win" else 3072
                k.I("s_add_u32 s%d, s%d, %d" % (sDma, sRot1, idx))
                k.I("s_and_b32 s%d, s%d, 3" % (sDma, sDma))
                k.I("s_mul_i32 s%d, s%d, %d" % (sDma, sDma, 128 * stride))
                if mul_reg is not None:
                    k.I("s_mul_i32 s%d, s%d, %d" % (sT3, mul_reg, mul))
                    k.I("s_add_u32 s%d, s%d, s%d" % (sDma, sDma, sT3))
                if add:
                    k.I("s_add_u32 s%d, s%d, %d" % (sDma, sDma, add))
            elif base == "sp":
                k.I("s_add_u32 s%d, s%d, %d" % (sDma, sRot2, idx))
                k.I("s_and_b32 s%d, s%d, 15" % (sDma, sDma))
                k.I("s_lshl_b32 s%d, s%d, 8" % (sDma, sDma))
                k.I("s_lshl_b32 s%d, s%d, 18" % (sT3, sT64))
                k.I("s_add_u32 s%d, s%d, s%d" % (sDma, sDma, sT3))
            elif base == "wo":
                k.I("s_add_u32 s%d, s%d, %d" % (sDma, sRot3a, idx))
                k.I("s_and_b32 s%d, s%d, 3" % (sDma, sDma))
                k.I("s_lshl_b32 s%d, s%d, 17" % (sDma, sDma))
                k.I("s_lshl_b32 s%d, s%d, 7" % (sT3, sJJ))
                k.I("s_add_u32 s%d, s%d, s%d" % (sDma, sDma, sT3))
            elif base == "wout":
                rot7(k, sDma, idx)
                k.I("s_lshl_b32 s%d, s%d, 17" % (sDma, sDma))
                k.I("s_lshl_b32 s%d, s%d, 7" % (sT3, sJJ))
                k.I("s_add_u32 s%d, s%d, s%d" % (sDma, sDma, sT3))
            k.I("s_add_u32 m0, s%d, %d" % (sW4k, s * 16384))
        base = kind.split(":")[0]
        j = self.sub
        if base == "x":
            vo, sr = vXo, S_X
        elif base == "W":
            vo, sr = (vWi, S_WIN) if extra[0] == "win" else (vWq, S_QKV)
        elif base == "sp":
            vo, sr = vSp, S_SP
        elif base == "wo":
            vo, sr = vW3, S_WO
        else:
            vo, sr = vW3, S_WOUT
        off = " offset:%d" % (1024 * j) if j else ""
        pol = (" " + self.opt.win) if self.opt.win else ""
        k.vmem("buffer_load_dwordx4 v%d, %s, s%d offen%s%s lds" % (vo + j, srd(sr), sDma, off, pol),
               tag=("dma", key) if j == 3 else None)
        self.last_t = k.t
        self.sub += 1
        if self.sub == 4:
            self.sub = 0
            self.nxt += 1

    def issue(self, n):
        for _ in range(n):
            if self.can_issue():
                self.issue_one()

    def pace(self, gap=None):
        gap = self.opt.gap if gap is None else gap
        if self.can_issue() and self.k.t - self.last_t >= gap:
            self.issue_one()

    def ensure_issued(self, key):
        while key not in self.slot or (self.nxt < len(self.chunks) and self.key(self.nxt) == key):
            assert self.can_issue(), ("cannot issue", key, self.free, self.nxt, self.limit)
            self.issue_one()

    def flush(self):
        while self.can_issue():
            self.issue_one()

    def release(self, key):
        self.free.append(self.slot[key])

    def sync(self, need=None, release=()):
        k = self.k
        if need is not None:
            self.ensure_issued(need)
        k.wait(vm=("dma", need) if need is not None else None, lg="all")
        k.I("s_barrier")
        for r in release:
            self.release(r)

    def addr(self, key, extra):
        a = self.slot[key] * 16384 + extra
        return a >> 16, a & 0xFFFF


def rot7(k, dst, idx):
    k.I("s_add_u32 s%d, s%d, %d" % (dst, sRot3b, idx))
    k.I("s_sub_u32 s%d, s%d, 7" % (sT3, dst))
    k.I("s_cmp_ge_u32 s%d, 7" % dst)
    k.I("s_cselect_b32 s%d, s%d, s%d" % (dst, sT3, dst))


class Gen:
    def __init__(self, opt):
        self.opt = opt
        self.k = KB()
        self.nst = 0

    def stamp(self, idx):
        if not self.opt.stamps:
            return
        k = self.k
        k.wait(lg="all")
        k.I("s_memtime s[%d:%d]" % (sStamp0 + 2 * idx, sStamp0 + 2 * idx + 1))
        k.I("s_waitcnt lgkmcnt(0)")

    def dump_stamps(self):
        if not self.opt.stamps:
            return
        k = self.k
        k.I("s_lshl_b32 s%d, s2, 2" % sT0)
        k.I("s_add_u32 s%d, s%d, s%d" % (sT0, sT0, sW))
        k.I("s_lshl_b32 s%d, s%d, 7" % (sT0, sT0))
        k.I("s_add_u32 s%d, s%d, %d" % (sT0, sT0, WS_DBG))
        for i in range(18):
            k.I("v_mov_b32 v%d, s%d" % (vT, sStamp0 + 2 * i))
            k.vmem("buffer_store_dword v%d, v%d, %s, s%d offen offset:%d" % (vT, vZero, srd(S_WS), sT0, 4 * i))
            k.I("s_nop 1")

    def prologue(self):
        k = self.k
        k.I("s_cmp_ge_u32 s2, 256")
        k.I("s_cbranch_scc1 L_end")
        if self.opt.stamps or self.opt.spin:
            k.I("s_memtime s[98:99]")
            k.I("s_memrealtime s[100:101]")
        k.I("s_load_dwordx16 s[68:83], s[0:1], 0")
        k.I("s_load_dwordx8 s[84:91], s[0:1], 64")
        k.I("s_mov_b32 s3, %d" % self.opt.budget)
        k.I("v_lshrrev_b32 v%d, 6, v0" % vT)
        k.I("v_and_b32 v%d, 63, v0" % vLane)
        k.I("v_readfirstlane_b32 s%d, v%d" % (sW, vT))
        k.I("s_and_b32 s%d, s2, 7" % sT0)
        k.I("s_lshr_b32 s%d, s2, 3" % sT1)
        k.I("s_lshr_b32 s%d, s%d, 1" % (sT128, sT0))
        k.I("s_lshl_b32 s%d, s%d, 2" % (sT128, sT128))
        k.I("s_lshr_b32 s%d, s%d, 3" % (sT2, sT1))
        k.I("s_add_u32 s%d, s%d, s%d" % (sT128, sT128, sT2))
        k.I("s_and_b32 s%d, s%d, 1" % (sR, sT0))
        k.I("s_lshl_b32 s%d, s%d, 3" % (sR, sR))
        k.I("s_and_b32 s%d, s%d, 7" % (sT2, sT1))
        k.I("s_add_u32 s%d, s%d, s%d" % (sR, sR, sT2))
        k.I("s_lshr_b32 s%d, s%d, 1" % (sJJ, sR))
        k.I("s_and_b32 s%d, s%d, 1" % (sAB, sR))
        k.I("s_lshl_b32 s%d, s%d, 1" % (sT64, sT128))
        k.I("s_add_u32 s%d, s%d, s%d" % (sT64, sT64, sAB))
        k.I("s_lshl_b32 s%d, s%d, 12" % (sW4k, sW))
        k.I("s_lshl_b32 s%d, s%d, 2" % (sPart, sT128))
        k.I("s_add_u32 s%d, s%d, s%d" % (sPart, sPart, sW))
        if self.opt.rot:
            k.I("s_add_u32 s%d, s%d, s%d" % (sRot1, sT128, sR))
            k.I("s_and_b32 s%d, s%d, 3" % (sRot1, sRot1))
            k.I("s_lshl_b32 s%d, s%d, 1" % (sRot2, sJJ))
            k.I("s_add_u32 s%d, s%d, s%d" % (sRot2, sRot2, sT64))
            k.I("s_lshl_b32 s%d, s%d, 1" % (sRot2, sRot2))
            k.I("s_and_b32 s%d, s%d, 15" % (sRot2, sRot2))
            k.I("s_add_u32 s%d, s%d, s%d" % (sRot3a, sT64, sJJ))
            k.I("s_and_b32 s%d, s%d, 3" % (sRot3a, sRot3a))
            k.I("s_lshl_b32 s%d, s%d, 1" % (sRot3b, sJJ))
            k.I("s_add_u32 s%d, s%d, s%d" % (sRot3b, sRot3b, sT64))
            k.I("s_and_b32 s%d, s%d, 7" % (sRot3b, sRot3b))
            k.I("s_min_u32 s%d, s%d, 6" % (sRot3b, sRot3b))
        else:
            for s in (sRot1, sRot2, sRot3a, sRot3b):
                k.I("s_mov_b32 s%d, 0" % s)
        u, p, lr, t0, t1, pu, pu6 = vT + 1, vT + 2, vT + 3, vT + 4, vT + 5, vT + 6, vT + 7
        k.I("v_lshrrev_b32 v%d, 3, v%d" % (u, vLane))
        k.I("v_and_b32 v%d, 7, v%d" % (p, vLane))
        k.I("v_lshrrev_b32 v%d, 2, v%d" % (t0, u))
        k.I("v_and_b32 v%d, 3, v%d" % (t1, u))
        k.I("v_lshl_add_u32 v%d, v%d, 3, v%d" % (lr, t0, t1))
        k.I("v_xor_b32 v%d, v%d, v%d" % (pu, p, u))
        k.I("v_lshlrev_b32 v%d, 4, v%d" % (pu, pu))
        k.I("v_and_b32 v%d, 6, v%d" % (t0, u))
        k.I("v_xor_b32 v%d, v%d, v%d" % (pu6, p, t0))
        k.I("v_lshlrev_b32 v%d, 4, v%d" % (pu6, pu6))
        k.I("s_lshl_b32 s%d, s%d, 5" % (sT0, sW))
        k.I("v_add_u32 v%d, s%d, v%d" % (t0, sT0, lr))
        k.I("v_lshl_add_u32 v%d, v%d, 10, v%d" % (vXo, t0, pu))
        for j in range(1, 4):
            k.I("v_add_u32 v%d, %d, v%d" % (vXo + j, (16 * (j & 1) + 4 * (j >> 1)) * 1024 - 1024 * j, vXo))
        for (vo, stride) in ((vWi, 3584), (vWq, 3072)):
            k.I("s_movk_i32 s%d, %d" % (sT1, stride))
            k.I("v_mad_u32_u24 v%d, v%d, s%d, v%d" % (vo, t0, sT1, pu6))
            for j in range(1, 4):
                k.I("v_add_u32 v%d, %d, v%d" % (vo + j, (16 * (j >> 1) + 4 * (j & 1)) * stride - 1024 * j, vo))
        k.I("s_waitcnt lgkmcnt(0)")
        ptr = {S_X: (68, 2048 * 512 * 2), S_QKV: (70, 512 * 1536 * 2), S_WO: (72, 512 * 512 * 2),
               S_WIN: (76, 512 * 1792 * 2), S_SP: (78, 2048 * 2048 * 2), S_BSP: (80, 2048 * 2),
               S_WOUT: (82, 896 * 512 * 2), S_GW: (84, 512 * 2), S_OUT: (86, 2048 * 512 * 2), S_WS: (90, WS_SIZE)}
        for s in (S_X, S_WIN, S_QKV, S_SP, S_WS, S_WO, S_BSP, S_WOUT, S_GW, S_OUT):
            src, size = ptr[s]
            if s == S_SP:
                k.I("s_sub_u32 s%d, s%d, 4096" % (s, src))
                k.I("s_subb_u32 s%d, s%d, 0" % (s + 1, src + 1))
                size += 4096
            else:
                k.I("s_mov_b32 s%d, s%d" % (s, src))
                k.I("s_mov_b32 s%d, s%d" % (s + 1, src + 1))
            k.I("s_mov_b32 s%d, 0x%x" % (s + 2, size))
            k.I("s_mov_b32 s%d, 0x20000" % (s + 3))
        self.pro_regs = (u, p, lr, t0, t1, pu, pu6)

    def prologue2(self):
        k = self.k
        u, p, lr, t0, t1, pu, pu6 = self.pro_regs
        t2, t3 = vT + 8, vT + 9
        k.I("v_and_b32 v%d, 15, v%d" % (vI, vLane))
        k.I("v_lshrrev_b32 v%d, 4, v%d" % (vG, vLane))
        k.I("v_lshlrev_b32 v%d, 4, v%d" % (vL16, vLane))
        k.I("v_add_u32 v%d, 4096, v%d" % (vL16b, vL16))
        k.I("v_lshlrev_b32 v%d, 3, v%d" % (vL8, vLane))
        k.I("v_mov_b32 v%d, 0" % vZero)
        k.I("s_lshr_b32 s%d, s%d, 1" % (sT0, sW))
        k.I("s_lshl_b32 s%d, s%d, 5" % (sT0, sT0))
        k.I("s_and_b32 s%d, s%d, 1" % (sT1, sW))
        k.I("s_lshl_b32 s%d, s%d, 2" % (sT1, sT1))
        k.I("s_add_u32 s%d, s%d, s%d" % (sT0, sT0, sT1))
        k.I("s_add_u32 s%d, s%d, 1" % (sT0, sT0))
        k.I("v_add_u32 v%d, s%d, v%d" % (t2, sT0, lr))
        k.I("v_lshl_add_u32 v%d, v%d, 12, v%d" % (vSp, t2, pu))
        for j in range(1, 4):
            c = 16 * (j & 1) * 4096 + (j >> 1) * 128 - 1024 * j
            if c >= 0:
                k.I("v_add_u32 v%d, %d, v%d" % (vSp + j, c, vSp))
            else:
                k.I("v_subrev_u32 v%d, %d, v%d" % (vSp + j, -c, vSp))
        k.I("s_lshl_b32 s%d, s%d, 5" % (sT0, sW))
        k.I("v_add_u32 v%d, s%d, v%d" % (t2, sT0, u))
        k.I("v_lshl_add_u32 v%d, v%d, 10, v%d" % (vW3, t2, pu6))
        for j in range(1, 4):
            k.I("v_add_u32 v%d, %d, v%d" % (vW3 + j, (16 * (j & 1) + 8 * (j >> 1)) * 1024 - 1024 * j, vW3))
        k.I("v_bfe_u32 v%d, v%d, 2, 3" % (t2, vLane))
        k.I("v_lshrrev_b32 v%d, 5, v%d" % (t3, vLane))
        k.I("v_lshl_add_u32 v%d, v%d, 4, v%d" % (t3, t3, t2))
        k.I("v_lshlrev_b32 v%d, 7, v%d" % (t3, t3))
        k.I("v_and_b32 v%d, 3, v%d" % (t0, vLane))
        k.I("v_lshl_add_u32 v%d, v%d, 3, v%d" % (t3, t0, t3))
        k.I("v_lshrrev_b32 v%d, 1, v%d" % (t2, t2))
        for cb in range(4):
            k.I("v_xor_b32 v%d, %d, v%d" % (t0, cb, t2))
            k.I("v_lshl_add_u32 v%d, v%d, 5, v%d" % (vTr + cb, t0, t3))
            k.I("v_add_u32 v%d, 0x10000, v%d" % (vTr + 4 + cb, vTr + cb))
            k.I("v_add_u32 v%d, 0x20000, v%d" % (vTr + 8 + cb, vTr + cb))
        k.I("v_and_b32 v%d, 7, v%d" % (t2, vI))
        k.I("v_xor_b32 v%d, v%d, v%d" % (t2, t2, vG))
        k.I("v_lshlrev_b32 v%d, 4, v%d" % (t2, t2))
        k.I("v_lshl_add_u32 v%d, v%d, 7, v%d" % (vRd, vI, t2))
        k.I("v_xor_b32 v%d, 64, v%d" % (vRd + 1, vRd))
        for b in range(1, 3):
            for kk in range(2):
                k.I("v_add_u32 v%d, 0x%x, v%d" % (vRd + 2 * b + kk, b << 16, vRd + kk))
        for n in range(6):
            k.I("v_add_u32 v%d, s%d, v%d" % (vRx + n, sW4k, vRd + n))
        c1 = -2.0 * math.sqrt(2.0 / math.pi) * math.log2(math.e)
        for (vr, val) in ((vC1, c1), (vC2, c1 * 0.044715), (vOne, 1.0), (vL2e, math.log2(math.e)), (vEps, 1e-6)):
            k.I("v_mov_b32 v%d, 0x%x" % (vr, f2u(val)))
            k.I("v_mov_b32 v%d, 0x%x" % (vr + 1, f2u(val)))
        k.vmem("buffer_load_dwordx2 %s, v%d, %s, 0 offen sc1" % (V(vTag, 2), vZero, srd(S_WS)), tag="epoch")

    def tag_setup(self):
        k = self.k
        k.wait(vm="epoch")
        k.I("v_add_u32 v%d, 0x%x, v%d" % (vTag, TAG0_INC, vTag))
        k.I("v_add_u32 v%d, 0x%x, v%d" % (vTag + 1, TAG1_INC, vTag + 1))
        k.I("v_readfirstlane_b32 s%d, v%d" % (sTag0, vTag))
        k.I("v_readfirstlane_b32 s%d, v%d" % (sTag1, vTag + 1))

    def code_prefetch(self):
        if not self.opt.codepf:
            return
        k = self.k
        lab = k.newlabel("pc")
        k.I("s_getpc_b64 s[%d:%d]" % (sT0 + 1, sT0 + 2))
        k.label(lab)
        k.raw("    s_sub_u32 s%d, s%d, %s-%s" % (sT0 + 1, sT0 + 1, lab, NAME))
        k.I("s_subb_u32 s%d, s%d, 0" % (sT0 + 2, sT0 + 2))
        k.I("s_lshr_b32 s%d, s2, 3" % sT0)
        k.I("s_lshl_b32 s%d, s%d, 2" % (sT0, sT0))
        k.I("s_add_u32 s%d, s%d, s%d" % (sT0, sT0, sW))
        k.I("s_lshl_b32 s%d, s%d, 10" % (sT0, sT0))
        k.I("v_and_b32 v%d, 7, v%d" % (vTmpA, vLane))
        k.I("v_lshlrev_b32 v%d, 7, v%d" % (vTmpA, vTmpA))
        k.I("v_add_u32 v%d, s%d, v%d" % (vTmpA, sT0, vTmpA))
        k.raw("    v_min_u32 v%d, L_code_end-%s-4, v%d" % (vTmpA, NAME, vTmpA))
        k.vmem("global_load_dword v%d, v%d, s[%d:%d]" % (vTmpB, vTmpA, sT0 + 1, sT0 + 2))

    def poll_issue(self, dst, voff, soff, imm, tag):
        off = " offset:%d" % imm if imm else ""
        txt = "buffer_load_dwordx2 %s, v%d, %s, %s offen%s sc1" % (V(dst, 2), voff, srd(S_WS), soff, off)
        self.k.vmem(txt, tag=tag)
        return txt

    def poll_check(self, dst, txt, tag, mask_lo=None):
        k = self.k
        k.wait(vm=tag)
        chk = k.newlabel("chk")
        rt = k.newlabel("retry")
        k.label(chk)
        k.I("v_xor_b32 v%d, s%d, v%d" % (vTmpA, sTag0, dst))
        k.I("v_bitop3_b32 v%d, v%d, s%d, v%d bitop3:0xbe" % (vTmpA, dst + 1, sTag1, vTmpA))
        k.I("v_cmp_ne_u32 vcc, 0, v%d" % vTmpA)
        if mask_lo is not None:
            k.I("s_and_b32 s%d, vcc_lo, 0x%x" % (sT3, mask_lo))
            k.I("s_cbranch_scc1 %s" % rt)
        else:
            k.I("s_cbranch_vccnz %s" % rt)
        self.retry_tail(rt, chk, [txt])

    def retry_tail(self, rt, chk, loads):
        k = self.k
        cont = k.newlabel("cont")
        k.label(cont)
        k.tail += [rt + ":", "    s_cmp_eq_u32 s3, 0", "    s_cbranch_scc1 " + cont, "    s_sub_u32 s3, s3, 1", "    s_sleep 1"]
        k.tail += ["    " + t for t in loads] + ["    s_waitcnt vmcnt(0)", "    s_branch " + chk]

    def flag_store(self, soff, after):
        k = self.k
        k.wait(vm=after)
        k.vmem("buffer_store_dwordx2 %s, v%d, %s, %s offen sc1" % (V(vTag, 2), vZero, srd(S_WS), soff))

    def tr_read(self, ring, key, ks, n, buf):
        cb, hh = n >> 1, n & 1
        bank, imm = ring.addr(key, ks * 4096 + hh * 1024)
        dst = vWf + buf * 16 + cb * 4 + hh * 2
        self.k.ds("ds_read_b64_tr_b16 %s, v%d offset:%d" % (V(dst, 2), vTr + bank * 4 + cb, imm), tag=("wf", buf, n))

    def x_read(self, ring, c):
        k = self.k
        key = ("x", c)
        ring.ensure_issued(key)
        k.wait(vm=("dma", key))
        for kk in range(2):
            for b in range(2):
                bank, imm = ring.addr(key, b * 2048)
                dst = ((2 * c + kk) * 2 + b) * 4
                k.ds("ds_read_b128 %s, v%d offset:%d" % (A(dst, 4), vRx + bank * 2 + kk, imm), tag=("xf", c))

    def run_lines(self, ring, lines, first_issue=16):
        k = self.k
        steps = [(li, n) for li in range(len(lines)) for n in range(16)]
        ckey = lambda li, n: ("W:%d" % li, n >> 2)
        self.x_read(ring, 0)
        ring.sync(need=ckey(0, 0), release=[("x", 0)])
        for n in range(8):
            self.tr_read(ring, ckey(0, 0), 0, n, 0)
        for si, (li, n) in enumerate(steps):
            L = lines[li]
            buf = si & 1
            nxt = steps[si + 1] if si + 1 < len(steps) else None
            boundary = (n & 3) == 3
            if li == 0 and n == 10:
                self.tag_setup()
            if n in L.get("hooks", {}):
                L["hooks"][n]()
            xrel = []
            if li == 0 and (n & 1) == 1 and n < 15:
                self.x_read(ring, (n + 1) >> 1)
                xrel = [("x", (n + 1) >> 1)]
            if li == 0 and (n & 1) == 0 and n > 0:
                k.wait(lg=("xf", n >> 1))
                if not ((n - 1) & 3) == 3:
                    ring.release(("x", n >> 1))
            rd = 0
            for m in range(8):
                cb, b = m >> 1, m & 1
                if boundary and m == 4:
                    ring.sync(need=ckey(*nxt) if nxt else None, release=[ckey(li, n)] + xrel)
                if b == 0:
                    k.wait(lg=("wf", buf, 2 * cb + 1))
                acc = L["acc"] + (b * 4 + cb) * 4
                xs = A((n * 2 + b) * 4, 4)
                ws = V(vWf + buf * 16 + cb * 4, 4)
                a_, b_ = (xs, ws) if L["orient"] == "S" else (ws, xs)
                k.I("v_mfma_f32_16x16x32_bf16 %s, %s, %s, %s" % (V(acc, 4), a_, b_, "0" if n == 0 else V(acc, 4)))
                if nxt:
                    cnt = 0 if (boundary and m < 4) else (2 if boundary else 1)
                    for _ in range(cnt):
                        self.tr_read(ring, ckey(*nxt), nxt[1] & 3, rd, buf ^ 1)
                        rd += 1
                if li == 0:
                    if m & 1:
                        ring.issue(1)
                else:
                    ring.pace()
            if n == 15:
                L["epi"]()

    def gelu(self, ring, acc, scale_pairs=None):
        k = self.k
        for grp in range(4):
            ps = [acc + grp * 8 + 2 * q for q in range(4)]
            ts = [vT + 2 * q for q in range(4)]
            for x, t in zip(ps, ts):
                k.I("v_pk_mul_f32 %s, %s, %s" % (V(t, 2), V(x, 2), V(x, 2)))
            for x, t in zip(ps, ts):
                k.I("v_pk_fma_f32 %s, %s, %s, %s" % (V(t, 2), V(t, 2), V(vC2, 2), V(vC1, 2)))
            for x, t in zip(ps, ts):
                k.I("v_pk_mul_f32 %s, %s, %s" % (V(t, 2), V(t, 2), V(x, 2)))
            ring.pace()
            for t in range(vT, vT + 8):
                k.I("v_exp_f32 v%d, v%d" % (t, t))
            ring.pace()
            for x, t in zip(ps, ts):
                k.I("v_pk_add_f32 %s, %s, %s" % (V(t, 2), V(t, 2), V(vOne, 2)))
            for t in range(vT, vT + 8):
                k.I("v_rcp_f32 v%d, v%d" % (t, t))
            ring.pace()
            for x, t in zip(ps, ts):
                k.I("v_pk_mul_f32 %s, %s, %s" % (V(x, 2), V(x, 2), V(t, 2)))

    def phi(self, ring, acc):
        k = self.k
        for grp in range(4):
            ps = [acc + grp * 8 + 2 * q for q in range(4)]
            ts = [vT + 2 * q for q in range(4)]
            for x, t in zip(ps, ts):
                k.I("v_pk_mul_f32 %s, %s, %s" % (V(t, 2), V(x, 2), V(vL2e, 2)))
            for t in range(vT, vT + 8):
                k.I("v_exp_f32_e64 v%d, v%d clamp" % (t, t))
            ring.pace()
            for x in range(acc + grp * 8, acc + grp * 8 + 8):
                k.I("v_max_f32 v%d, 0, v%d" % (x, x))
            for x, t in zip(ps, ts):
                k.I("v_pk_add_f32 %s, %s, %s" % (V(x, 2), V(x, 2), V(t, 2)))
            for x, t in zip(ps, ts):
                k.I("v_pk_add_f32 %s, %s, %s" % (V(x, 2), V(x, 2), V(vEps, 2)))
            ring.pace()

    def pack_S(self, acc, dst):
        for cb in range(4):
            for b in range(2):
                for h in range(2):
                    s = acc + (b * 4 + cb) * 4 + 2 * h
                    self.k.I("v_cvt_pk_bf16_f32 v%d, v%d, v%d" % (dst + cb * 4 + b * 2 + h, s, s + 1))

    def pack_F(self, acc, dst):
        for q in range(16):
            self.k.I("v_cvt_pk_bf16_f32 v%d, v%d, v%d" % (dst + q, acc + 2 * q, acc + 2 * q + 1))

    def epi_z2_stats(self, ring):
        k = self.k
        acc = accA
        self.stamp(1)
        self.gelu(ring, acc)
        S, Q = vT + 8, vT + 16
        y = lambda b, cb, h: acc + (b * 4 + cb) * 4 + 2 * h
        for b in range(2):
            for h in range(2):
                k.I("v_pk_add_f32 %s, %s, %s" % (V(S + b * 4 + 2 * h, 2), V(y(b, 0, h), 2), V(y(b, 1, h), 2)))
                k.I("v_pk_mul_f32 %s, %s, %s" % (V(Q + b * 4 + 2 * h, 2), V(y(b, 0, h), 2), V(y(b, 0, h), 2)))
        for cb in range(1, 4):
            for b in range(2):
                for h in range(2):
                    if cb > 1:
                        k.I("v_pk_add_f32 %s, %s, %s" % (V(S + b * 4 + 2 * h, 2), V(S + b * 4 + 2 * h, 2), V(y(b, cb, h), 2)))
                    k.I("v_pk_fma_f32 %s, %s, %s, %s" % (V(Q + b * 4 + 2 * h, 2), V(y(b, cb, h), 2), V(y(b, cb, h), 2), V(Q + b * 4 + 2 * h, 2)))
            ring.pace()
        dpp = lambda d, s, ctl, bm: k.I("v_add_f32_dpp v%d, v%d, v%d %s row_mask:0xf bank_mask:0x%x" % (d, s, s, ctl, bm))
        for X in (S, Q):
            for r in range(4):
                dpp(X + r, X + r, "row_ror:8", 0x3)
        for X in (S, Q):
            for r in range(4):
                dpp(X + r, X + 4 + r, "row_ror:8", 0xc)
        ring.pace()
        for X in (S, Q):
            for r in range(2):
                dpp(X + r, X + r, "row_half_mirror", 0x5)
        for X in (S, Q):
            for r in range(2):
                dpp(X + r, X + 2 + r, "row_half_mirror", 0xa)
        for ctl in ("quad_perm:[1,0,3,2]", "quad_perm:[2,3,0,1]"):
            for X in (S, Q):
                for r in range(2):
                    dpp(X + r, X + r, ctl, 0xf)
        t = vT
        k.I("v_and_b32 v%d, 1, v%d" % (t, vLane))
        k.I("v_cmp_eq_u32 vcc, 1, v%d" % t)
        k.I("v_lshrrev_b32 v%d, 2, v%d" % (t + 1, vLane))
        k.I("v_lshl_add_u32 v%d, v%d, 1, v%d" % (t + 1, t + 1, t))
        k.I("v_lshlrev_b32 v%d, 4, v%d" % (t + 1, t + 1))
        k.I("v_cndmask_b32 v%d, v%d, v%d, vcc" % (vGr, S, S + 1))
        k.I("v_cndmask_b32 v%d, v%d, v%d, vcc" % (vGr + 1, Q, Q + 1))
        k.I("s_mul_i32 s%d, s%d, %d" % (sBase, sPart, 14 * 512))
        k.I("s_add_u32 s%d, s%d, %d" % (sBase, sBase, WS_STATS))
        k.I("s_lshl_b32 s%d, s%d, 9" % (sT0, sR))
        k.I("s_add_u32 s%d, s%d, s%d" % (sT0, sT0, sBase))
        k.vmem("buffer_store_dwordx4 %s, v%d, %s, s%d offen sc1" % (V(vGr, 4), t + 1, srd(S_WS), sT0))
        self.stamp(2)

    ST = vT + 24
    STA = vT + 52

    def stats_issue(self):
        k = self.k
        a = self.STA
        k.I("v_and_b32 v%d, 7, v%d" % (a, vI))
        k.I("v_lshl_add_u32 v%d, v%d, 3, v%d" % (a, vG, a))
        k.I("v_lshlrev_b32 v%d, 4, v%d" % (a, a))
        k.I("v_lshrrev_b32 v%d, 3, v%d" % (a + 1, vI))
        k.I("v_lshl_add_u32 v%d, v%d, 9, v%d" % (a, a + 1, a))
        k.I("v_add_u32 v%d, 4096, v%d" % (a + 1, a))
        self.stats_txt = []
        for n in range(7):
            off = " offset:%d" % ((n & 3) * 1024) if n & 3 else ""
            txt = "buffer_load_dwordx4 %s, v%d, %s, s%d offen%s sc1" % (V(self.ST + 4 * n, 4), a + (n >> 2), srd(S_WS), sBase, off)
            self.stats_txt.append(txt)
            k.vmem(txt, tag="stats" if n == 6 else None)

    def normalize_publish(self, ring):
        k = self.k
        acc, ST = accA, self.ST
        self.stamp(3)
        k.wait(vm="stats")
        chk, rt = k.newlabel("chk"), k.newlabel("retry")
        k.label(chk)
        k.I("v_xor_b32 v%d, s%d, v%d" % (vTmpA, sTag0, ST + 2))
        k.I("v_xor_b32 v%d, s%d, v%d" % (vTmpB, sTag1, ST + 3))
        for n in range(1, 7):
            k.I("v_bitop3_b32 v%d, v%d, s%d, v%d bitop3:0xbe" % (vTmpA, ST + 4 * n + 2, sTag0, vTmpA))
            k.I("v_bitop3_b32 v%d, v%d, s%d, v%d bitop3:0xbe" % (vTmpB, ST + 4 * n + 3, sTag1, vTmpB))
        k.I("v_or_b32 v%d, v%d, v%d" % (vTmpA, vTmpA, vTmpB))
        k.I("v_cmp_ne_u32 vcc, 0, v%d" % vTmpA)
        k.I("s_cbranch_vccnz %s" % rt)
        self.retry_tail(rt, chk, self.stats_txt)
        self.stamp(4)
        for (d, s) in ((0, 1), (2, 3), (4, 5), (0, 2), (4, 6), (0, 4)):
            k.I("v_pk_add_f32 %s, %s, %s" % (V(ST + 4 * d, 2), V(ST + 4 * d, 2), V(ST + 4 * s, 2)))
        k.I("v_add_f32_dpp v%d, v%d, v%d row_ror:8 row_mask:0xf bank_mask:0xf" % (ST, ST, ST))
        k.I("v_add_f32_dpp v%d, v%d, v%d row_ror:8 row_mask:0xf bank_mask:0xf" % (ST + 1, ST + 1, ST + 1))
        mean, var, rs, nm = ST + 4, ST + 5, ST + 6, ST + 7
        k.I("v_mul_f32 v%d, 0x%x, v%d" % (mean, f2u(1.0 / 896), ST))
        k.I("v_mul_f32 v%d, 0x%x, v%d" % (var, f2u(1.0 / 896), ST + 1))
        k.I("v_fma_f32 v%d, -v%d, v%d, v%d" % (var, mean, mean, var))
        k.I("v_max_f32 v%d, 0, v%d" % (var, var))
        k.I("v_add_f32 v%d, 0x%x, v%d" % (var, f2u(1e-5), var))
        k.I("v_rsq_f32 v%d, v%d" % (rs, var))
        k.I("v_mul_f32_e64 v%d, -v%d, v%d" % (nm, mean, rs))
        R, NM = vT, vT + 8
        for q in range(8):
            k.I("v_mov_b32_dpp v%d, v%d row_newbcast:%d row_mask:0xf bank_mask:0xf" % (R + q, rs, q))
        for q in range(8):
            k.I("v_mov_b32_dpp v%d, v%d row_newbcast:%d row_mask:0xf bank_mask:0xf" % (NM + q, nm, q))
        ring.pace()
        for cb in range(4):
            for b in range(2):
                for h in range(2):
                    y = acc + (b * 4 + cb) * 4 + 2 * h
                    k.I("v_pk_fma_f32 %s, %s, %s, %s" % (V(y, 2), V(y, 2), V(R + 4 * b + 2 * h, 2), V(NM + 4 * b + 2 * h, 2)))
        P = ST + 8
        self.pack_S(acc, P)
        k.I("s_lshl_b32 s%d, s%d, 18" % (sT0, sR))
        k.I("s_lshl_b32 s%d, s%d, 11" % (sT1, sPart))
        k.I("s_add_u32 s%d, s%d, s%d" % (sT0, sT0, sT1))
        k.I("s_add_u32 s%d, s%d, %d" % (sT0, sT0, WS_Z2N))
        k.I("s_add_u32 s%d, s%d, %d" % (sT1, sT0, 131072))
        for cb in range(4):
            off = " offset:1024" if cb & 1 else ""
            k.vmem("buffer_store_dwordx4 %s, v%d, %s, s%d offen%s sc1" % (V(P + cb * 4, 4), vL16, srd(S_WS), sT0 + (cb >> 1), off),
                   tag="z2n_st" if cb == 3 else None)
        self.stamp(5)

    def z2n_flag(self):
        k = self.k
        k.I("s_lshl_b32 s%d, s%d, 9" % (sT0, sR))
        k.I("s_lshl_b32 s%d, s%d, 3" % (sT1, sPart))
        k.I("s_add_u32 s%d, s%d, s%d" % (sT0, sT0, sT1))
        k.I("s_add_u32 s%d, s%d, %d" % (sT0, sT0, WS_FZ))
        self.flag_store("s%d" % sT0, "z2n_st")

    def epi_kv(self, ring, accK, accV, pk=None):
        k = self.k
        if pk is None:
            self.phi(ring, accK)
            pk = vT + 8
            self.pack_S(accK, pk)
        pv = vT + 24
        self.pack_S(accV, pv)
        ind = vT + 40
        D = accK
        k.I("v_mov_b32 v%d, 0x3f803f80" % (vT + 44))
        for cb in range(4):
            k.I("v_cmp_eq_u32 vcc, %d, v%d" % (cb, vI))
            for q in range(4):
                k.I("v_cndmask_b32 v%d, v%d, v%d, vcc" % (ind + q + (cb & 1) * 8, vZero, vT + 44))
            k.I("v_mfma_f32_16x16x32_bf16 %s, %s, %s, 0" % (V(D + cb * 4, 4), V(pk + cb * 4, 4), V(pv + cb * 4, 4)))
            k.I("v_mfma_f32_16x16x32_bf16 %s, %s, %s, %s" % (V(D + 16, 4), V(pk + cb * 4, 4), V(ind + (cb & 1) * 8, 4), "0" if cb == 0 else V(D + 16, 4)))
        k.I("s_lshl_b32 s%d, s%d, 18" % (sT0, sJJ))
        k.I("s_lshl_b32 s%d, s%d, 10" % (sT1, sPart))
        k.I("s_add_u32 s%d, s%d, s%d" % (sT0, sT0, sT1))
        k.I("s_add_u32 s%d, s%d, %d" % (sT0, sT0, WS_KVP))
        za = vT + 45
        k.I("v_lshl_add_u32 v%d, v%d, 2, v%d" % (za, vI, vG))
        k.I("v_lshlrev_b32 v%d, 4, v%d" % (za, za))
        k.I("v_cmp_gt_u32 vcc, 4, v%d" % vI)
        k.I("v_mov_b32 v%d, 0x%x" % (za + 1, WS_SIZE))
        k.I("v_cndmask_b32 v%d, v%d, v%d, vcc" % (za, za + 1, za))
        for cb in range(4):
            k.vmem("buffer_store_dwordx4 %s, v%d, %s, s%d offen sc1" % (V(D + cb * 4, 4), vL16, srd(S_WS), sT0))
            if cb < 3:
                k.I("s_add_u32 s%d, s%d, 65536" % (sT0, sT0))
        k.I("s_lshl_b32 s%d, s%d, 14" % (sT0, sJJ))
        k.I("s_lshl_b32 s%d, s%d, 8" % (sT1, sPart))
        k.I("s_add_u32 s%d, s%d, s%d" % (sT0, sT0, sT1))
        k.I("s_add_u32 s%d, s%d, %d" % (sT0, sT0, WS_ZP))
        k.vmem("buffer_store_dwordx4 %s, v%d, %s, s%d offen sc1" % (V(D + 16, 4), za, srd(S_WS), sT0), tag="pub_st")
        k.I("s_lshl_b32 s%d, s%d, 9" % (sFlagOff, sJJ))
        k.I("s_lshl_b32 s%d, s%d, 3" % (sT1, sPart))
        k.I("s_add_u32 s%d, s%d, s%d" % (sFlagOff, sFlagOff, sT1))
        k.I("s_add_u32 s%d, s%d, %d" % (sFlagOff, sFlagOff, WS_FKV))

    def epi_z1(self, ring, acc, half):
        k = self.k
        self.gelu(ring, acc)
        P = vT + 8
        self.pack_F(acc, P)
        k.I("s_mul_i32 s%d, s%d, %d" % (sT0, sPart, 2 * 28 * 1024))
        k.I("s_lshl_b32 s%d, s%d, 12" % (sT1, sJJ))
        k.I("s_add_u32 s%d, s%d, s%d" % (sT0, sT0, sT1))
        k.I("s_add_u32 s%d, s%d, %d" % (sT0, sT0, WS_Z1 + half * 2048))
        k.I("s_add_u32 s%d, s%d, %d" % (sT1, sT0, 28 * 1024))
        for b in range(2):
            for pr in range(2):
                off = " offset:1024" if pr else ""
                k.vmem("buffer_store_dwordx4 %s, v%d, %s, s%d offen%s sc1" % (V(P + b * 8 + pr * 4, 4), vL16, srd(S_WS), sT0 + b, off),
                       tag="pub_st")
        if half == 1:
            k.I("s_lshl_b32 s%d, s%d, 3" % (sFlagOff, sT128))
            k.I("s_add_u32 s%d, s%d, s%d" % (sFlagOff, sFlagOff, sJJ))
            k.I("s_lshl_b32 s%d, s%d, 7" % (sFlagOff, sFlagOff))
            k.I("s_lshl_b32 s%d, s%d, 3" % (sT1, sW))
            k.I("s_add_u32 s%d, s%d, s%d" % (sFlagOff, sFlagOff, sT1))
            k.I("s_add_u32 s%d, s%d, %d" % (sFlagOff, sFlagOff, WS_FZ1))

    @staticmethod
    def stream(lines, main):
        ch = []
        for c in range(4):
            ch += [("x", 2 * c, None), ("W:0", c, lines[0]), ("x", 2 * c + 1, None)]
        for li in range(1, len(lines)):
            ch += [("W:%d" % li, c, lines[li]) for c in range(4)]
        if main:
            ch += [("sp", c, None) for c in range(16)]
        ch += [("wo", c, None) for c in range(4)]
        ch += [("wout", c, None) for c in range(7)]
        return ch

    def start_role(self, lines, main):
        ring = Ring(self.k, self.opt, self.stream(lines, main))
        ring.issue(12)
        self.code_prefetch()
        self.prologue2()
        ring.issue(4)
        self.stamp(0)
        return ring

    def role_main(self, ab):
        k = self.k
        z2 = ("win", sR, 128, 1792)
        if ab == 0:
            wl = [z2, ("qkv", sJJ, 128, 1024), ("qkv", sJJ, 128, 2048)]
        else:
            wl = [z2, ("win", sJJ, 256, 0), ("win", sJJ, 256, 128)]
        ring = self.start_role(wl, True)
        ring.limit = 20 + 16
        o = "S" if ab == 0 else "F"

        def epi3():
            self.stamp(6)
            if ab == 0:
                self.epi_kv(ring, accB, accC)
            else:
                self.epi_z1(ring, accB, 0)
                self.epi_z1(ring, accC, 1)
        lines = [dict(orient="S", acc=accA, epi=lambda: self.epi_z2_stats(ring)),
                 dict(orient=o, acc=accB, epi=lambda: self.normalize_publish(ring), hooks={11: self.stats_issue}),
                 dict(orient=o, acc=accC, epi=epi3, hooks={6: self.z2n_flag})]
        self.run_lines(ring, lines)
        ring.flush()
        return ring

    def phase2(self, ring):
        k, D = self.k, self.opt.zdepth
        Zs = 128
        acc = accA
        Bq = accB
        Z1 = accC
        FL = vT
        self.stamp(7)
        k.I("s_lshr_b32 s%d, s%d, 1" % (sT0, sW))
        k.I("s_lshl_b32 s%d, s%d, 1" % (sT1, sJJ))
        k.I("s_add_u32 s%d, s%d, s%d" % (sT0, sT0, sT1))
        k.I("s_lshl_b32 s%d, s%d, 9" % (sT0, sT0))
        k.I("s_add_u32 s%d, s%d, %d" % (sT2, sT0, WS_FZ))
        txt = self.poll_issue(FL, vL8, "s%d" % sT2, 0, "fz")
        t = vT + 2
        k.I("v_lshrrev_b32 v%d, 2, v%d" % (t, vI))
        k.I("v_and_b32 v%d, 3, v%d" % (t + 1, vI))
        k.I("v_lshl_add_u32 v%d, v%d, 3, v%d" % (t, t, t + 1))
        k.I("v_lshlrev_b32 v%d, 1, v%d" % (t, t))
        k.I("s_lshl_b32 s%d, s%d, 7" % (sT0, sT64))
        for tb in range(4):
            o = (32 * (tb >> 1) + 4 * (tb & 1)) * 2
            k.vmem("buffer_load_ushort v%d, v%d, %s, s%d offen%s" % (Bq + tb * 4, t, srd(S_BSP), sT0, " offset:%d" % o if o else ""), tag="bias")
        k.I("s_lshl_b32 s%d, s%d, 2" % (sBase, sJJ))
        k.I("s_add_u32 s%d, s%d, s%d" % (sBase, sBase, sW))
        k.I("s_lshl_b32 s%d, s%d, 17" % (sBase, sBase))
        k.I("s_add_u32 s%d, s%d, %d" % (sBase, sBase, WS_Z2N))
        self.poll_check(FL, txt, "fz")
        self.stamp(8)

        def zload(n, fb):
            if (n & 3) == 0 and fb == 0:
                k.I("s_add_u32 s%d, s%d, %d" % (sZoff, sRot2, n >> 2))
                k.I("s_and_b32 s%d, s%d, 15" % (sZoff, sZoff))
                k.I("s_lshl_b32 s%d, s%d, 13" % (sZoff, sZoff))
                k.I("s_add_u32 s%d, s%d, s%d" % (sZoff, sZoff, sBase))
            o = (n & 3) * 2048 + fb * 1024
            vo = vL16b if o >= 4096 else vL16
            o &= 4095
            k.vmem("buffer_load_dwordx4 %s, v%d, %s, s%d offen%s sc1" % (A(Zs + ((n % D) * 2 + fb) * 4, 4), vo, srd(S_WS), sZoff, " offset:%d" % o if o else ""),
                   tag=("z", n, fb))

        def aread(n, tb):
            key = ("sp", n >> 2)
            ks = n & 3
            bank, imm = ring.addr(key, tb * 4096 + (ks >> 1) * 2048)
            k.ds("ds_read_b128 %s, v%d offset:%d" % (V(vWf + (n & 1) * 16 + tb * 4, 4), vRd + bank * 2 + (ks & 1), imm), tag=("af", n & 1, tb))

        for n in range(D - 1):
            zload(n, 0)
            zload(n, 1)
        self.flag_store("s%d" % sFlagOff, "pub_st")
        k.wait(vm="bias")
        for tb in range(4):
            k.I("v_lshlrev_b32 v%d, 16, v%d" % (Bq + tb * 4, Bq + tb * 4))
        for tb in range(4):
            for q in range(1, 4):
                k.I("v_mov_b32 v%d, v%d" % (Bq + tb * 4 + q, Bq + tb * 4))
        ring.sync(need=("sp", 0))
        for tb in range(4):
            aread(0, tb)
        hooks = {}

        def z1_poll():
            k.I("s_lshl_b32 s%d, s%d, 3" % (sT2, sT128))
            k.I("s_add_u32 s%d, s%d, s%d" % (sT2, sT2, sJJ))
            k.I("s_lshl_b32 s%d, s%d, 7" % (sT2, sT2))
            k.I("s_add_u32 s%d, s%d, %d" % (sT2, sT2, WS_FZ1))
            k.I("v_and_b32 v%d, 24, v%d" % (FL + 2, vL8))
            self.z1txt = self.poll_issue(FL, FL + 2, "s%d" % sT2, 0, "fz1")

        def z1_load():
            self.poll_check(FL, self.z1txt, "fz1")
            k.I("s_mul_i32 s%d, s%d, %d" % (sT0, sT64, 4 * 28 * 1024))
            k.I("s_lshl_b32 s%d, s%d, 2" % (sT1, sJJ))
            k.I("s_add_u32 s%d, s%d, s%d" % (sT1, sT1, sW))
            k.I("s_lshl_b32 s%d, s%d, 10" % (sT1, sT1))
            k.I("s_add_u32 s%d, s%d, s%d" % (sT0, sT0, sT1))
            k.I("s_add_u32 s%d, s%d, %d" % (sT0, sT0, WS_Z1))
            for tb in range(4):
                k.vmem("buffer_load_dwordx4 %s, v%d, %s, s%d offen sc1" % (V(Z1 + tb * 4, 4), vL16, srd(S_WS), sT0), tag="z1")
                if tb < 3:
                    k.I("s_add_u32 s%d, s%d, %d" % (sT0, sT0, 28 * 1024))

        def z1_unpack(tb):
            k.wait(vm="z1")
            for q in range(4):
                fb, h = q >> 1, q & 1
                d = accB + (fb * 4 + tb) * 4 + 2 * h
                k.I("v_lshlrev_b32 v%d, 16, v%d" % (d, Z1 + tb * 4 + q))
                k.I("v_and_b32 v%d, 0xffff0000, v%d" % (d + 1, Z1 + tb * 4 + q))
        hooks[28] = z1_poll
        hooks[38] = z1_load
        for tb in range(4):
            hooks[49 + tb] = (lambda tb=tb: z1_unpack(tb))
        hooks[64 - D + 1] = lambda: setattr(ring, "limit", 36 + 4)
        for n in range(64):
            boundary = (n & 3) == 3
            if n in hooks:
                hooks[n]()
            k.wait(vm=("z", n, 1))
            rd = 0
            for m in range(8):
                tb, fb = m >> 1, m & 1
                if boundary and m == 4:
                    ring.sync(need=("sp", (n + 1) >> 2) if n < 63 else None, release=[("sp", n >> 2)])
                if fb == 0:
                    k.wait(lg=("af", n & 1, tb))
                d = acc + (fb * 4 + tb) * 4
                k.I("v_mfma_f32_16x16x32_bf16 %s, %s, %s, %s" % (V(d, 4), A(Zs + ((n % D) * 2 + fb) * 4, 4), V(vWf + (n & 1) * 16 + tb * 4, 4),
                                                                V(Bq + tb * 4, 4) if n == 0 else V(d, 4)))
                if n < 63:
                    if (boundary and m >= 4) or (not boundary and (m & 1) == 0):
                        aread(n + 1, rd)
                        rd += 1
                nn = n + D - 1
                if m in (1, 3) and nn < 64:
                    zload(nn, m >> 1)
                if m == 5 or (nn >= 64 and m in (1, 3)):
                    ring.issue(1)
        self.stamp(9)
        P = accC
        for fb in range(2):
            for tb in range(4):
                for h in range(2):
                    d = acc + (fb * 4 + tb) * 4 + 2 * h
                    k.I("v_pk_mul_f32 %s, %s, %s" % (V(d, 2), V(d, 2), V(accB + (fb * 4 + tb) * 4 + 2 * h, 2)))
        k.I("s_mul_i32 s%d, s%d, %d" % (sT0, sT64, 4 * 44 * 1024))
        k.I("s_lshl_b32 s%d, s%d, 2" % (sT1, sJJ))
        k.I("s_add_u32 s%d, s%d, s%d" % (sT1, sT1, sW))
        k.I("s_lshl_b32 s%d, s%d, 3" % (sFlagOff, sT1))
        k.I("s_lshl_b32 s%d, s%d, 10" % (sT1, sT1))
        k.I("s_add_u32 s%d, s%d, s%d" % (sT0, sT0, sT1))
        k.I("s_add_u32 s%d, s%d, %d" % (sT0, sT0, WS_A3 + 16 * 1024))
        for tb in range(4):
            for fb in range(2):
                for h in range(2):
                    d = acc + (fb * 4 + tb) * 4 + 2 * h
                    k.I("v_cvt_pk_bf16_f32 v%d, v%d, v%d" % (P + tb * 4 + fb * 2 + h, d, d + 1))
            k.vmem("buffer_store_dwordx4 %s, v%d, %s, s%d offen sc1" % (V(P + tb * 4, 4), vL16, srd(S_WS), sT0), tag="pub_st")
            if tb < 3:
                k.I("s_add_u32 s%d, s%d, %d" % (sT0, sT0, 44 * 1024))
        k.I("s_lshl_b32 s%d, s%d, 8" % (sT1, sT64))
        k.I("s_add_u32 s%d, s%d, s%d" % (sFlagOff, sFlagOff, sT1))
        k.I("s_add_u32 s%d, s%d, %d" % (sFlagOff, sFlagOff, WS_FH))

    def phase3(self, ring):
        k = self.k
        FL = vT
        accO, accH = accA, accA + 16
        ring.limit = len(ring.chunks)
        k.I("s_lshl_b32 s%d, s%d, 8" % (sT2, sT64))
        k.I("s_add_u32 s%d, s%d, %d" % (sT2, sT2, WS_FH))
        k.I("v_and_b32 v%d, 0xf8, v%d" % (FL + 2, vL8))
        ring.issue(6)
        self.flag_store("s%d" % sFlagOff, "pub_st")
        self.stamp(10)
        txt = self.poll_issue(FL, FL + 2, "s%d" % sT2, 0, "fo")
        k.I("s_lshl_b32 s%d, s%d, 2" % (sBase, sT64))
        k.I("s_add_u32 s%d, s%d, s%d" % (sBase, sBase, sW))
        k.I("s_lshl_b32 s%d, s%d, 6" % (sT0, sBase))
        k.I("s_mul_i32 s%d, s%d, %d" % (sBase, sBase, 44 * 1024))
        k.I("s_add_u32 s%d, s%d, %d" % (sBase, sBase, WS_A3))
        k.I("s_add_u32 s%d, s%d, %d" % (sT0, sT0, WS_GATE))
        ring.issue(6)
        self.poll_check(FL, txt, "fo", mask_lo=0xf0000000)
        self.stamp(11)
        gt = vT + 4
        k.I("v_lshlrev_b32 v%d, 2, v%d" % (gt + 1, vI))
        k.vmem("buffer_load_dword v%d, v%d, %s, s%d offen sc1" % (gt, gt + 1, srd(S_WS), sT0), tag="gate")

        def aload(part, c):
            if part == 0:
                k.I("s_add_u32 s%d, s%d, %d" % (sZoff, sRot3a, c))
                k.I("s_and_b32 s%d, s%d, 3" % (sZoff, sZoff))
            else:
                rot7(k, sZoff, c)
                k.I("s_add_u32 s%d, s%d, 4" % (sZoff, sZoff))
            k.I("s_lshl_b32 s%d, s%d, 12" % (sZoff, sZoff))
            k.I("s_add_u32 s%d, s%d, s%d" % (sZoff, sZoff, sBase))
            for q in range(4):
                n = (part * 4 + c) * 4 + q
                k.vmem("buffer_load_dwordx4 %s, v%d, %s, s%d offen%s sc1" % (A(n * 4, 4), vL16, srd(S_WS), sZoff, " offset:%d" % (q * 1024) if q else ""),
                       tag=("a3", n))
        for c in range(4):
            aload(0, c)
        ring.flush()
        ckey = lambda n: ("wo", n >> 2) if n < 16 else ("wout", (n - 16) >> 2)
        ring.sync(need=ckey(0))
        for q in range(8):
            self.tr_read(ring, ckey(0), 0, q, 0)
        for n in range(44):
            buf = n & 1
            boundary = (n & 3) == 3
            if n == 12:
                self.htxt = self.poll_issue(FL, FL + 2, "s%d" % sT2, 0, "fh")
            if n == 16:
                self.stamp(12)
                self.poll_check(FL, self.htxt, "fh", mask_lo=0x0fffffff)
                self.stamp(13)
                for c in range(7):
                    aload(1, c)
            k.wait(vm=("a3", n))
            acc = accO if n < 16 else accH
            rd = 0
            for nb in range(4):
                if boundary and nb == 2:
                    ring.sync(need=ckey(n + 1) if n < 43 else None, release=[ckey(n)])
                    ring.flush()
                k.wait(lg=("wf", buf, 2 * nb + 1))
                d = acc + nb * 4
                k.I("v_mfma_f32_16x16x32_bf16 %s, %s, %s, %s" % (V(d, 4), V(vWf + buf * 16 + nb * 4, 4), A(n * 4, 4), "0" if n in (0, 16) else V(d, 4)))
                if n < 43:
                    cnt = (0 if nb < 2 else 4) if boundary else 2
                    for _ in range(cnt):
                        self.tr_read(ring, ckey(n + 1), (n + 1) & 3, rd, buf ^ 1)
                        rd += 1
        self.stamp(14)
        k.wait(vm="gate")
        k.I("v_mov_b32 v%d, v%d" % (gt + 1, gt))
        for q in range(8):
            k.I("v_pk_add_f32 %s, %s, %s neg_lo:[0,1] neg_hi:[0,1]" % (V(accO + 2 * q, 2), V(accO + 2 * q, 2), V(accH + 2 * q, 2)))
        for q in range(8):
            k.I("v_pk_fma_f32 %s, %s, %s, %s" % (V(accO + 2 * q, 2), V(accO + 2 * q, 2), V(gt, 2), V(accH + 2 * q, 2)))
        P = accB
        for q in range(8):
            k.I("v_cvt_pk_bf16_f32 v%d, v%d, v%d" % (P + q, accO + 2 * q, accO + 2 * q + 1))
        wa, ra, ga = vT + 8, vT + 9, vT + 10
        k.I("v_mul_u32_u24 v%d, 144, v%d" % (wa, vI))
        k.I("v_lshl_add_u32 v%d, v%d, 3, v%d" % (wa, vG, wa))
        k.I("v_add_u32 v%d, s%d, v%d" % (wa, sW4k, wa))
        slot = ring.free[0] * 16384
        k.I("v_add_u32 v%d, %d, v%d" % (wa, slot, wa))
        for nb in range(4):
            k.ds("ds_write_b64 v%d, %s offset:%d" % (wa, V(P + 2 * nb, 2), nb * 32))
        u, p = vT + 11, vT + 12
        k.I("v_lshrrev_b32 v%d, 3, v%d" % (u, vLane))
        k.I("v_and_b32 v%d, 7, v%d" % (p, vLane))
        k.I("v_mul_u32_u24 v%d, 144, v%d" % (ra, u))
        k.I("v_lshl_add_u32 v%d, v%d, 4, v%d" % (ra, p, ra))
        k.I("v_add_u32 v%d, s%d, v%d" % (ra, sW4k, ra))
        k.I("v_add_u32 v%d, %d, v%d" % (ra, slot, ra))
        k.I("v_lshrrev_b32 v%d, 2, v%d" % (ga, u))
        k.I("v_and_b32 v%d, 3, v%d" % (u, u))
        k.I("v_lshl_add_u32 v%d, v%d, 3, v%d" % (ga, ga, u))
        k.I("v_lshlrev_b32 v%d, 10, v%d" % (ga, ga))
        k.I("v_lshl_add_u32 v%d, v%d, 4, v%d" % (ga, p, ga))
        k.I("s_lshl_b32 s%d, s%d, 6" % (sT0, sT64))
        k.I("s_lshr_b32 s%d, s%d, 1" % (sT1, sW))
        k.I("s_lshl_b32 s%d, s%d, 5" % (sT1, sT1))
        k.I("s_add_u32 s%d, s%d, s%d" % (sT0, sT0, sT1))
        k.I("s_and_b32 s%d, s%d, 1" % (sT1, sW))
        k.I("s_lshl_b32 s%d, s%d, 2" % (sT1, sT1))
        k.I("s_add_u32 s%d, s%d, s%d" % (sT0, sT0, sT1))
        k.I("s_lshl_b32 s%d, s%d, 10" % (sT0, sT0))
        k.I("s_lshl_b32 s%d, s%d, 7" % (sT1, sJJ))
        k.I("s_add_u32 s%d, s%d, s%d" % (sT0, sT0, sT1))
        k.I("s_add_u32 s%d, s%d, %d" % (sT1, sT0, 16 * 1024))
        k.wait(lg="all")
        for j in range(2):
            k.ds("ds_read_b128 %s, v%d offset:%d" % (V(P + 8 + 4 * j, 4), ra, j * 8 * 144), tag=("o", j))
        for j in range(2):
            k.wait(lg=("o", j))
            k.vmem("buffer_store_dwordx4 %s, v%d, %s, s%d offen" % (V(P + 8 + 4 * j, 4), ga, srd(S_OUT), sT0 + j))
        self.stamp(15)
        self.dump_stamps()
        if self.opt.spin:
            lab = k.newlabel("spin")
            skip = k.newlabel("nospin")
            if self.opt.spinwg >= 0:
                k.I("s_cmp_lg_u32 s2, %d" % self.opt.spinwg)
                k.I("s_cbranch_scc1 %s" % skip)
            k.label(lab)
            k.I("s_memrealtime s[8:9]")
            k.I("s_waitcnt lgkmcnt(0)")
            k.I("s_sub_u32 s8, s8, s100")
            k.I("s_cmp_lt_u32 s8, %d" % self.opt.spin)
            k.I("s_cbranch_scc1 %s" % lab)
            k.label(skip)

    def role_spare(self, s):
        k = self.k
        PQ = [100, 116, 164, 180, 212]
        if s == 0:
            wl = [("qkv", None, 0, 1024 + 7 * 128), ("qkv", None, 0, 2048 + 7 * 128)] + [("qkv", None, 0, L * 128) for L in range(3)]
            qlines = [0, 1, 2]
        else:
            wl = [("qkv", None, 0, L * 128) for L in range(3, 8)]
            qlines = [3, 4, 5, 6, 7]
        ring = self.start_role(wl, False)
        ring.limit = len(ring.chunks) - 2
        PK = 228

        def epi_q(n):
            self.phi(ring, accA)
            self.pack_F(accA, PQ[n])

        def epi_k():
            self.phi(ring, accA)
            self.pack_S(accA, PK)

        def epi_v():
            self.epi_kv_spare(ring, PK)

        def gate():
            gw, bc, D = vT + 8, vT + 12, vT + 20
            k.wait(vm="gw")
            for n in range(16):
                bb = bc + (n & 1) * 4
                for q in range(4):
                    k.I("v_mov_b32_dpp v%d, v%d row_newbcast:%d row_mask:0xf bank_mask:0xf" % (bb + q, gw + q, n))
                for b in range(2):
                    k.I("v_mfma_f32_16x16x32_bf16 %s, %s, %s, %s" % (V(D + 4 * b, 4), V(bb, 4), A((n * 2 + b) * 4, 4), "0" if n == 0 else V(D + 4 * b, 4)))
                ring.pace()
            for b in range(2):
                k.I("v_mul_f32_e64 v%d, -v%d, v%d" % (D + 4 * b, D + 4 * b, vL2e))
            for b in range(2):
                k.I("v_exp_f32 v%d, v%d" % (D + 4 * b, D + 4 * b))
            for b in range(2):
                k.I("v_add_f32 v%d, 1.0, v%d" % (D + 4 * b, D + 4 * b))
            for b in range(2):
                k.I("v_rcp_f32 v%d, v%d" % (D + 4 * b, D + 4 * b))
            k.I("v_lshlrev_b32 v%d, 2, v%d" % (gw, vI))
            k.I("s_lshl_b32 s%d, s%d, 7" % (sT0, sPart))
            k.I("s_add_u32 s%d, s%d, %d" % (sT0, sT0, WS_GATE))
            for b in range(2):
                k.vmem("buffer_store_dword v%d, v%d, %s, s%d offen%s sc1" % (D + 4 * b, gw, srd(S_WS), sT0, " offset:64" if b else ""), tag="pub_st")

        def gw_load():
            gw = vT + 8
            t = vT + 30
            k.I("s_lshl_b32 s%d, s%d, 2" % (sT0, sRot1))
            k.I("v_add_u32 v%d, s%d, v%d" % (t, sT0, vI))
            k.I("v_and_b32 v%d, 15, v%d" % (t, t))
            k.I("v_lshl_add_u32 v%d, v%d, 2, v%d" % (t, t, vG))
            k.I("v_lshlrev_b32 v%d, 4, v%d" % (t, t))
            k.vmem("buffer_load_dwordx4 %s, v%d, %s, 0 offen" % (V(gw, 4), t, srd(S_GW)), tag="gw")

        if s == 0:
            lines = [dict(orient="S", acc=accA, epi=epi_k),
                     dict(orient="S", acc=accA, epi=epi_v),
                     dict(orient="F", acc=accA, epi=lambda: epi_q(0), hooks={6: lambda: self.flag_store("s%d" % sFlagOff, "pub_st")}),
                     dict(orient="F", acc=accA, epi=lambda: epi_q(1)),
                     dict(orient="F", acc=accA, epi=lambda: epi_q(2))]
        else:
            lines = [dict(orient="F", acc=accA, epi=lambda: (gate(), epi_q(0)), hooks={8: gw_load})]
            lines += [dict(orient="F", acc=accA, epi=(lambda n=n: epi_q(n))) for n in range(1, 5)]
        self.run_lines(ring, lines)
        self.stamp(6)
        FL = vT
        k.I("s_lshr_b32 s%d, s%d, 2" % (sT0, sT64))
        k.I("s_lshl_b32 s%d, s%d, 9" % (sT2, sT0))
        k.I("s_add_u32 s%d, s%d, %d" % (sT2, sT2, WS_FKV))
        txt = self.poll_issue(FL, vL8, "s%d" % sT2, 0, "fkv")
        self.poll_check(FL, txt, "fkv")
        self.stamp(7)
        KP = [accA + 4 * n for n in range(8)] + [vWf + 4 * n for n in range(8)]
        k.I("s_lshl_b32 s%d, s%d, 16" % (sT1, sT64))
        k.I("s_lshl_b32 s%d, s%d, 14" % (sT2, sW))
        k.I("s_add_u32 s%d, s%d, s%d" % (sT1, sT1, sT2))
        k.I("s_add_u32 s%d, s%d, %d" % (sT1, sT1, WS_KVP))
        for n in range(16):
            if n and (n & 3) == 0:
                k.I("s_add_u32 s%d, s%d, 4096" % (sT1, sT1))
            k.vmem("buffer_load_dwordx4 %s, v%d, %s, s%d offen%s sc1" % (V(KP[n], 4), vL16, srd(S_WS), sT1, " offset:%d" % ((n & 3) * 1024) if n & 3 else ""),
                   tag=("kp", n))
        ZR, za = vT + 4, vT + 2
        k.I("s_lshl_b32 s%d, s%d, 14" % (sT0, sT0))
        k.I("s_add_u32 s%d, s%d, s%d" % (sT0, sT0, sW4k))
        k.I("s_and_b32 s%d, s%d, 3" % (sT2, sT64))
        k.I("s_lshl_b32 s%d, s%d, 6" % (sT2, sT2))
        k.I("s_add_u32 s%d, s%d, s%d" % (sT0, sT0, sT2))
        k.I("s_add_u32 s%d, s%d, %d" % (sT0, sT0, WS_ZP))
        k.I("v_lshlrev_b32 v%d, 4, v%d" % (za, vG))
        k.I("v_lshl_add_u32 v%d, v%d, 8, v%d" % (za, vI, za))
        k.vmem("buffer_load_dwordx4 %s, v%d, %s, s%d offen sc1" % (V(ZR, 4), za, srd(S_WS), sT0), tag="zp")
        for n in range(1, 16):
            k.wait(vm=("kp", n))
            for h in range(2):
                k.I("v_pk_add_f32 %s, %s, %s" % (V(KP[0] + 2 * h, 2), V(KP[0] + 2 * h, 2), V(KP[n] + 2 * h, 2)))
        k.wait(vm="zp")
        for ctl in ("row_ror:8", "row_ror:4", "row_ror:2", "row_ror:1"):
            for q in range(4):
                k.I("v_add_f32_dpp v%d, v%d, v%d %s row_mask:0xf bank_mask:0xf" % (ZR + q, ZR + q, ZR + q, ctl))
        slot = ring.free[-1] * 16384
        la = vT + 3
        k.I("v_add_u32 v%d, %d, v%d" % (la, slot, vL16))
        k.I("v_add_u32 v%d, s%d, v%d" % (za, sW4k, la))
        k.ds("ds_write_b128 v%d, %s" % (za, V(KP[0], 4)))
        k.ds("ds_write_b128 v%d, %s offset:1024" % (za, V(ZR, 4)))
        k.wait(lg="all")
        k.I("s_barrier")
        for w in range(4):
            k.ds("ds_read_b128 %s, v%d offset:%d" % (V(accA + 8 * w, 4), la, w * 4096))
            k.ds("ds_read_b128 %s, v%d offset:%d" % (V(accA + 8 * w + 4, 4), la, w * 4096 + 1024))
        k.wait(lg="all")
        k.I("s_barrier")
        for w in range(1, 4):
            for h in range(4):
                k.I("v_pk_add_f32 %s, %s, %s" % (V(accA + 2 * h, 2), V(accA + 2 * h, 2), V(accA + 8 * w + 2 * h, 2)))
        for h in range(4):
            k.I("v_cvt_pk_bf16_f32 v%d, v%d, v%d" % (accA + 8 + h, accA + 2 * h, accA + 2 * h + 1))
        k.I("s_lshl_b32 s%d, s%d, 10" % (sT0, sT64))
        k.I("s_add_u32 s%d, s%d, %d" % (sT0, sT0, WS_KVF))
        k.vmem("buffer_store_dwordx4 %s, v%d, %s, s%d offen sc1" % (V(accA + 8, 4), vL16, srd(S_WS), sT0), tag="kvf_st")
        k.I("s_lshl_b32 s%d, s%d, 3" % (sT0, sT64))
        k.I("s_add_u32 s%d, s%d, %d" % (sT0, sT0, WS_FKF))
        self.flag_store("s%d" % sT0, "kvf_st")
        k.I("v_and_b32 v%d, 0xf8, v%d" % (FL + 2, vL8))
        k.I("s_mov_b32 s%d, %d" % (sT2, WS_FKF))
        txt = self.poll_issue(FL, FL + 2, "s%d" % sT2, 0, "fkf")
        self.poll_check(FL, txt, "fkf", mask_lo=(0x00000fff if s == 0 else 0xfffff000))
        self.stamp(8)
        KF = 128
        for n, L in enumerate(qlines):
            k.I("s_mov_b32 s%d, %d" % (sT0, WS_KVF + L * 4096))
            for cb in range(4):
                k.vmem("buffer_load_dwordx4 %s, v%d, %s, s%d offen%s sc1" % (A(KF + (n * 4 + cb) * 4, 4), vL16, srd(S_WS), sT0, " offset:%d" % (cb * 1024) if cb else ""),
                       tag=("kf", n))
        k.I("s_mul_i32 s%d, s%d, %d" % (sBase, sPart, 2 * 44 * 1024))
        k.I("s_add_u32 s%d, s%d, %d" % (sBase, sBase, WS_A3))
        for n, L in enumerate(qlines):
            k.wait(vm=("kf", n))
            NUM, DEN, RC = accA, vWf, 244
            P = 228 if (n & 1) == 0 else vT
            for b in range(2):
                for cb in range(4):
                    q = b * 4 + cb
                    kf = KF + (n * 4 + cb) * 4
                    k.I("v_mfma_f32_16x16x16_bf16 %s, %s, %s, 0" % (V(DEN + q * 4, 4), A(kf + 2, 2), V(PQ[n] + q * 2, 2)))
                    k.I("v_mfma_f32_16x16x16_bf16 %s, %s, %s, 0" % (V(NUM + q * 4, 4), A(kf, 2), V(PQ[n] + q * 2, 2)))
            for q in range(8):
                k.I("v_add_f32 v%d, v%d, v%d" % (RC + q, vEps, DEN + q * 4))
            for q in range(8):
                k.I("v_rcp_f32 v%d, v%d" % (RC + q, RC + q))
            for q in range(8):
                for e in range(4):
                    k.I("v_mul_f32 v%d, v%d, v%d" % (NUM + q * 4 + e, NUM + q * 4 + e, RC + q))
            self.pack_F(NUM, P)
            k.I("s_add_u32 s%d, s%d, %d" % (sT0, sBase, L * 2048))
            k.I("s_add_u32 s%d, s%d, %d" % (sT1, sT0, 44 * 1024))
            for b in range(2):
                for pr in range(2):
                    k.vmem("buffer_store_dwordx4 %s, v%d, %s, s%d offen%s sc1" % (V(P + b * 8 + pr * 4, 4), vL16, srd(S_WS), sT0 + b, " offset:1024" if pr else ""),
                           tag="pub_st")
        k.I("s_lshr_b32 s%d, s%d, 1" % (sFlagOff, sPart))
        k.I("s_lshl_b32 s%d, s%d, 8" % (sFlagOff, sFlagOff))
        k.I("s_and_b32 s%d, s%d, 1" % (sT1, sW))
        k.I("s_lshl_b32 s%d, s%d, 3" % (sT1, sT1))
        k.I("s_add_u32 s%d, s%d, s%d" % (sFlagOff, sFlagOff, sT1))
        k.I("s_add_u32 s%d, s%d, %d" % (sFlagOff, sFlagOff, WS_FH + (28 + 2 * s) * 8))
        self.stamp(9)
        return ring

    def epi_kv_spare(self, ring, pk):
        k = self.k
        for q in range(16):
            k.I("v_mov_b32 v%d, v%d" % (vT + 8 + q, pk + q))
        self.epi_kv(ring, accC, accA, pk=vT + 8)

    def build(self):
        k = self.k
        self.prologue()
        k.I("s_cmp_eq_u32 s%d, 14" % sR)
        k.I("s_cbranch_scc1 L_roleS0")
        k.I("s_cmp_eq_u32 s%d, 15" % sR)
        k.I("s_cbranch_scc1 L_roleS1")
        k.I("s_cmp_eq_u32 s%d, 1" % sAB)
        k.I("s_cbranch_scc1 L_roleB")
        s0 = k.snapshot()
        ra = self.role_main(0)
        k.I("s_nop 7")
        k.I("s_branch L_P2")
        sa = k.snapshot()
        k.label("L_roleB")
        k.restore(s0)
        rb = self.role_main(1)
        k.I("s_nop 7")
        sb = k.snapshot()
        assert ra.state()[:4] == rb.state()[:4], (ra.state(), rb.state())
        k.label("L_P2")
        k.join([sa, sb])
        rb.last_t = -10 ** 9
        self.phase2(rb)
        self.phase3(rb)
        k.I("s_cmp_lg_u32 s2, 0")
        k.I("s_cbranch_scc1 L_end")
        k.vmem("buffer_store_dwordx2 %s, v%d, %s, 0 offen sc1" % (V(vTag, 2), vZero, srd(S_WS)))
        if self.opt.stamps:
            k.I("s_load_dwordx2 s[4:5], s[0:1], 80")
            k.I("s_memrealtime s[8:9]")
            k.I("s_waitcnt lgkmcnt(0)")
            k.I("s_sub_u32 s8, s8, s100")
            k.I("v_mov_b32 v%d, s8" % vT)
            k.vmem("global_store_dword v%d, v%d, s[4:5]" % (vZero, vT))
            for i in range(1, 16):
                k.I("s_sub_u32 s8, s%d, s98" % (sStamp0 + 2 * i))
                k.I("v_mov_b32 v%d, s8" % (vT + i))
                k.vmem("global_store_dword v%d, v%d, s[4:5] offset:%d" % (vZero, vT + i, 4 * i))
        k.I("s_branch L_end")
        snaps, rings = [], []
        for s in range(2):
            k.comment("---------------- role S%d ----------------" % s)
            k.label("L_roleS%d" % s)
            k.restore(s0)
            r = self.role_spare(s)
            r.flush()
            k.I("s_nop 7")
            if s == 0:
                k.I("s_branch L_P3s")
            snaps.append(k.snapshot())
            rings.append(r)
        assert rings[0].state()[:4] == rings[1].state()[:4]
        k.label("L_P3s")
        k.join(snaps)
        self.phase3(rings[1])
        k.label("L_end")
        k.I("s_endpgm")
        k.tail.append("L_code_end:")
        k.tail.append("    s_endpgm")
        return k.text()


HEADER = """; Fused gated_mix(linear attention block, gMLP mixer): one persistent launch, 256 workgroups x 256 threads.
; Generated by gen/gen.py (hand-written generator).
; Kernarg: A_x, A_wqkv, A_wo, B_x, B_w_in, B_w_sp, B_b_sp, B_w_out, gate_w, out, debug, ws
; @launch grid=(256,1,1) block=(256,1,1) lds=163840
.amdgcn_target "amdgcn-amd-amdhsa--gfx950"
.text
.globl %s
.p2align 8
.type %s,@function
%s:
""" % (NAME, NAME, NAME)

FOOTER = """.section .rodata,"a"
.p2align 6
.amdhsa_kernel %s
  .amdhsa_next_free_vgpr 512
  .amdhsa_next_free_sgpr 102
  .amdhsa_accum_offset 256
  .amdhsa_group_segment_fixed_size 0
  .amdhsa_kernarg_size 96
  .amdhsa_user_sgpr_count 2
  .amdhsa_user_sgpr_kernarg_segment_ptr 1
  .amdhsa_system_sgpr_workgroup_id_x 1
.end_amdhsa_kernel
""" % NAME


def generate(**kw):
    opt = Opt()
    for a, b in kw.items():
        assert hasattr(opt, a), a
        setattr(opt, a, b)
    g = Gen(opt)
    body = g.build()
    return HEADER + body + FOOTER


if __name__ == "__main__":
    out = sys.argv[1]
    kw = {}
    for a in sys.argv[2:]:
        key, val = a.split("=")
        try:
            val = int(val)
        except ValueError:
            pass
        kw[key] = val
    open(out, "w").write(generate(**kw))
```

```python
import sys, struct, math
from kb import KB

NAME = "gated_mix__linear_attn_block__mixer_gmlp__prompt_kernel"

WS_E = 0
WS_FZ = 0x1000
WS_FH = 0x3000
WS_FZ1 = 0x5000
WS_FKV = 0xA000
WS_FKF = 0xB000
WS_GATE = 0xC000
WS_STATS = 0x10000
WS_ZP = 0x80000
WS_KVF = 0xA0000
WS_KVP = 0x100000
WS_Z2N = 0x300000
WS_Z1 = 0x680000
WS_A3 = 0xA00000
WS_DBG = 0xF80000
WS_SIZE = 0x1000000

TAG0_INC = 0x9E3779B9
TAG1_INC = 0x7F4A7C15

S_X, S_QKV, S_WO, S_WIN, S_SP, S_BSP, S_WOUT, S_GW, S_OUT, S_WS = 4, 8, 12, 16, 20, 24, 28, 32, 36, 40
sW, sT128, sR, sJJ, sAB, sT64, sTag0, sTag1 = 44, 45, 46, 47, 48, 49, 50, 51
sRot1, sRot2, sRot3a, sRot3b, sW4k, sPart = 52, 53, 54, 55, 56, 57
sDma = 58
sT0, sT1, sT2, sT3 = 59, 60, 61, 62
sZoff = 63
sFlagOff = 64
sBase = 65
sStamp0 = 66


def srd(b):
    return "s[%d:%d]" % (b, b + 3)


vLane, vI, vG = 1, 2, 3
vXo, vWi, vWq, vSp, vW3 = 4, 8, 12, 16, 20
vTr, vRd, vRx = 24, 36, 42
vL16, vL16b = 48, 49
vZero, vL8 = 50, 51
vC1, vC2, vOne, vL2e, vEps = 52, 54, 56, 58, 60
vTmpA, vTmpB = 62, 63
vGr = 64
vTag = 66
accA, accB, vWf, accC, vT = 68, 100, 132, 164, 196


def f2u(x):
    return struct.unpack("<I", struct.pack("<f", x))[0]


def V(b, n=1):
    return "v%d" % b if n == 1 else "v[%d:%d]" % (b, b + n - 1)


def A(b, n=1):
    return "a%d" % b if n == 1 else "a[%d:%d]" % (b, b + n - 1)


STAMPSETS = {
    1: list(range(16)),
    2: [0, "L0_0", "L0_4", "L0_8", "L0_12", 1, 2, "L1_8", 3, 4, 5, "L2_8", 6, 7, 8, 15],
    3: [7, 8, "P2_0", "P2_8", "P2_16", "P2_24", "P2_32", "P2_40", "P2_48", "P2_56", 9, 10, 11, 12, 13, 15],
    4: [9, 10, 11, "P3_0", "P3_4", "P3_8", "P3_12", 12, 13, "P3_17", "P3_20", "P3_28", "P3_36", 14, 15, 6],
    5: [0, "L1_0", "L2_0", "L3_0", "L4_0", 6, 7, "R1", "R2", "R3", 8, "R4", 9, 10, 11, 15],
}


class Opt:
    win = ""
    stamps = False
    gap = 100
    zdepth = 8
    rot = True
    codepf = True
    diag = None
    expose = None
    l0next = 10
    first = 12
    spinwg = -1
    spin = 0
    budget = 20000


class Ring:
    NS = 10

    def __init__(self, k, opt, chunks):
        self.k, self.opt = k, opt
        self.chunks = chunks
        self.free = list(range(self.NS))
        self.slot = {}
        self.nxt = 0
        self.sub = 0
        self.last_t = -10 ** 9
        self.limit = len(chunks)
        self.visible = set()

    def state(self):
        return (list(self.free), dict(self.slot), self.nxt, self.sub, set(self.visible))

    def key(self, n):
        c = self.chunks[n]
        return (c[0], c[1])

    def can_issue(self):
        if self.nxt >= min(self.limit, len(self.chunks)):
            return False
        return self.sub > 0 or bool(self.free)

    def issue_one(self):
        k = self.k
        kind, idx, extra = self.chunks[self.nxt]
        key = (kind, idx)
        if self.sub == 0:
            s = self.free.pop(0)
            self.slot[key] = s
            base = kind.split(":")[0]
            if base == "x":
                k.I("s_lshl_b32 s%d, s%d, 8" % (sDma, sRot1))
                k.I("s_add_u32 s%d, s%d, %d" % (sDma, sDma, idx * 128))
                k.I("s_and_b32 s%d, s%d, 1023" % (sDma, sDma))
                k.I("s_lshl_b32 s%d, s%d, 17" % (sT3, sT128))
                k.I("s_add_u32 s%d, s%d, s%d" % (sDma, sDma, sT3))
            elif base == "W":
                mat, mul_reg, mul, add = extra
                stride = 3584 if mat == "win" else 3072
                k.I("s_add_u32 s%d, s%d, %d" % (sDma, sRot1, idx))
                k.I("s_and_b32 s%d, s%d, 3" % (sDma, sDma))
                k.I("s_mul_i32 s%d, s%d, %d" % (sDma, sDma, 128 * stride))
                if mul_reg is not None:
                    k.I("s_mul_i32 s%d, s%d, %d" % (sT3, mul_reg, mul))
                    k.I("s_add_u32 s%d, s%d, s%d" % (sDma, sDma, sT3))
                if add:
                    k.I("s_add_u32 s%d, s%d, %d" % (sDma, sDma, add))
            elif base == "sp":
                k.I("s_add_u32 s%d, s%d, %d" % (sDma, sRot2, idx))
                k.I("s_and_b32 s%d, s%d, 15" % (sDma, sDma))
                k.I("s_lshl_b32 s%d, s%d, 8" % (sDma, sDma))
                k.I("s_lshl_b32 s%d, s%d, 18" % (sT3, sT64))
                k.I("s_add_u32 s%d, s%d, s%d" % (sDma, sDma, sT3))
            elif base == "wo":
                k.I("s_add_u32 s%d, s%d, %d" % (sDma, sRot3a, idx))
                k.I("s_and_b32 s%d, s%d, 3" % (sDma, sDma))
                k.I("s_lshl_b32 s%d, s%d, 17" % (sDma, sDma))
                k.I("s_lshl_b32 s%d, s%d, 7" % (sT3, sJJ))
                k.I("s_add_u32 s%d, s%d, s%d" % (sDma, sDma, sT3))
            elif base == "wout":
                rot7(k, sDma, idx)
                k.I("s_lshl_b32 s%d, s%d, 17" % (sDma, sDma))
                k.I("s_lshl_b32 s%d, s%d, 7" % (sT3, sJJ))
                k.I("s_add_u32 s%d, s%d, s%d" % (sDma, sDma, sT3))
            k.I("s_add_u32 m0, s%d, %d" % (sW4k, s * 16384))
        base = kind.split(":")[0]
        j = self.sub
        if base == "x":
            vo, sr = vXo, S_X
        elif base == "W":
            vo, sr = (vWi, S_WIN) if extra[0] == "win" else (vWq, S_QKV)
        elif base == "sp":
            vo, sr = vSp, S_SP
        elif base == "wo":
            vo, sr = vW3, S_WO
        else:
            vo, sr = vW3, S_WOUT
        off = " offset:%d" % (1024 * j) if j else ""
        pol = (" " + self.opt.win) if self.opt.win else ""
        k.vmem("buffer_load_dwordx4 v%d, %s, s%d offen%s%s lds" % (vo + j, srd(sr), sDma, off, pol),
               tag=("dma", key) if j == 3 else None)
        self.last_t = k.t
        self.sub += 1
        if self.sub == 4:
            self.sub = 0
            self.nxt += 1

    def issue(self, n):
        for _ in range(n):
            if self.can_issue():
                self.issue_one()

    def pace(self, gap=None):
        gap = self.opt.gap if gap is None else gap
        if self.can_issue() and self.k.t - self.last_t >= gap:
            self.issue_one()

    def ensure_issued(self, key):
        while key not in self.slot or (self.nxt < len(self.chunks) and self.key(self.nxt) == key):
            assert self.can_issue(), ("cannot issue", key, self.free, self.nxt, self.limit)
            self.issue_one()

    def flush(self):
        while self.can_issue():
            self.issue_one()

    def release(self, key):
        self.free.append(self.slot[key])

    def sync(self, need=None, release=()):
        k = self.k
        if need is not None:
            self.ensure_issued(need)
        k.wait(vm=("dma", need) if need is not None else None, lg="all")
        k.I("s_barrier")
        for r in release:
            self.release(r)

    def addr(self, key, extra):
        a = self.slot[key] * 16384 + extra
        return a >> 16, a & 0xFFFF


def rot7(k, dst, idx):
    k.I("s_add_u32 s%d, s%d, %d" % (dst, sRot3b, idx))
    k.I("s_sub_u32 s%d, s%d, 7" % (sT3, dst))
    k.I("s_cmp_ge_u32 s%d, 7" % dst)
    k.I("s_cselect_b32 s%d, s%d, s%d" % (dst, sT3, dst))


class Gen:
    def __init__(self, opt):
        self.opt = opt
        self.k = KB()
        self.nst = 0

    def stamp(self, idx):
        if not self.opt.stamps:
            return
        names = STAMPSETS[self.opt.stamps]
        if idx not in names:
            return
        idx = names.index(idx)
        k = self.k
        k.wait(lg="all")
        k.I("s_memtime s[%d:%d]" % (sStamp0 + 2 * idx, sStamp0 + 2 * idx + 1))
        k.I("s_waitcnt lgkmcnt(0)")

    def dump_stamps(self):
        if not self.opt.stamps:
            return
        k = self.k
        k.I("s_lshl_b32 s%d, s2, 2" % sT0)
        k.I("s_add_u32 s%d, s%d, s%d" % (sT0, sT0, sW))
        k.I("s_lshl_b32 s%d, s%d, 7" % (sT0, sT0))
        k.I("s_add_u32 s%d, s%d, %d" % (sT0, sT0, WS_DBG))
        for i in range(18):
            k.I("v_mov_b32 v%d, s%d" % (vT, sStamp0 + 2 * i))
            k.vmem("buffer_store_dword v%d, v%d, %s, s%d offen offset:%d" % (vT, vZero, srd(S_WS), sT0, 4 * i))
            k.I("s_nop 1")

    def prologue(self):
        k = self.k
        k.I("s_cmp_ge_u32 s2, 256")
        k.I("s_cbranch_scc1 L_end")
        if self.opt.stamps or self.opt.spin:
            k.I("s_memtime s[98:99]")
            k.I("s_memrealtime s[100:101]")
        k.I("s_load_dwordx16 s[68:83], s[0:1], 0")
        k.I("s_load_dwordx8 s[84:91], s[0:1], 64")
        k.I("s_mov_b32 s3, %d" % self.opt.budget)
        k.I("v_lshrrev_b32 v%d, 6, v0" % vT)
        k.I("v_and_b32 v%d, 63, v0" % vLane)
        k.I("v_readfirstlane_b32 s%d, v%d" % (sW, vT))
        k.I("s_and_b32 s%d, s2, 7" % sT0)
        k.I("s_lshr_b32 s%d, s2, 3" % sT1)
        k.I("s_lshr_b32 s%d, s%d, 1" % (sT128, sT0))
        k.I("s_lshl_b32 s%d, s%d, 2" % (sT128, sT128))
        k.I("s_lshr_b32 s%d, s%d, 3" % (sT2, sT1))
        k.I("s_add_u32 s%d, s%d, s%d" % (sT128, sT128, sT2))
        k.I("s_and_b32 s%d, s%d, 1" % (sR, sT0))
        k.I("s_lshl_b32 s%d, s%d, 3" % (sR, sR))
        k.I("s_and_b32 s%d, s%d, 7" % (sT2, sT1))
        k.I("s_add_u32 s%d, s%d, s%d" % (sR, sR, sT2))
        k.I("s_lshr_b32 s%d, s%d, 1" % (sJJ, sR))
        k.I("s_and_b32 s%d, s%d, 1" % (sAB, sR))
        k.I("s_lshl_b32 s%d, s%d, 1" % (sT64, sT128))
        k.I("s_add_u32 s%d, s%d, s%d" % (sT64, sT64, sAB))
        k.I("s_lshl_b32 s%d, s%d, 12" % (sW4k, sW))
        k.I("s_lshl_b32 s%d, s%d, 2" % (sPart, sT128))
        k.I("s_add_u32 s%d, s%d, s%d" % (sPart, sPart, sW))
        if self.opt.rot:
            k.I("s_add_u32 s%d, s%d, s%d" % (sRot1, sT128, sR))
            k.I("s_and_b32 s%d, s%d, 3" % (sRot1, sRot1))
            k.I("s_lshl_b32 s%d, s%d, 1" % (sRot2, sJJ))
            k.I("s_add_u32 s%d, s%d, s%d" % (sRot2, sRot2, sT64))
            k.I("s_lshr_b32 s%d, s%d, 2" % (sT2, sJJ))
            k.I("s_add_u32 s%d, s%d, s%d" % (sRot2, sRot2, sT2))
            k.I("s_lshl_b32 s%d, s%d, 1" % (sRot2, sRot2))
            k.I("s_and_b32 s%d, s%d, 15" % (sRot2, sRot2))
            k.I("s_add_u32 s%d, s%d, s%d" % (sRot3a, sT64, sJJ))
            k.I("s_and_b32 s%d, s%d, 3" % (sRot3a, sRot3a))
            k.I("s_lshl_b32 s%d, s%d, 1" % (sRot3b, sJJ))
            k.I("s_add_u32 s%d, s%d, s%d" % (sRot3b, sRot3b, sT64))
            k.I("s_and_b32 s%d, s%d, 7" % (sRot3b, sRot3b))
            k.I("s_min_u32 s%d, s%d, 6" % (sRot3b, sRot3b))
        else:
            for s in (sRot1, sRot2, sRot3a, sRot3b):
                k.I("s_mov_b32 s%d, 0" % s)
        u, p, lr, t0, t1, pu, pu6 = vT + 1, vT + 2, vT + 3, vT + 4, vT + 5, vT + 6, vT + 7
        k.I("v_lshrrev_b32 v%d, 3, v%d" % (u, vLane))
        k.I("v_and_b32 v%d, 7, v%d" % (p, vLane))
        k.I("v_lshrrev_b32 v%d, 2, v%d" % (t0, u))
        k.I("v_and_b32 v%d, 3, v%d" % (t1, u))
        k.I("v_lshl_add_u32 v%d, v%d, 3, v%d" % (lr, t0, t1))
        k.I("v_xor_b32 v%d, v%d, v%d" % (pu, p, u))
        k.I("v_lshlrev_b32 v%d, 4, v%d" % (pu, pu))
        k.I("v_and_b32 v%d, 6, v%d" % (t0, u))
        k.I("v_xor_b32 v%d, v%d, v%d" % (pu6, p, t0))
        k.I("v_lshlrev_b32 v%d, 4, v%d" % (pu6, pu6))
        k.I("s_lshl_b32 s%d, s%d, 5" % (sT0, sW))
        k.I("v_add_u32 v%d, s%d, v%d" % (t0, sT0, lr))
        k.I("v_lshl_add_u32 v%d, v%d, 10, v%d" % (vXo, t0, pu))
        for j in range(1, 4):
            k.I("v_add_u32 v%d, %d, v%d" % (vXo + j, (16 * (j & 1) + 4 * (j >> 1)) * 1024 - 1024 * j, vXo))
        for (vo, stride) in ((vWi, 3584), (vWq, 3072)):
            k.I("s_movk_i32 s%d, %d" % (sT1, stride))
            k.I("v_mad_u32_u24 v%d, v%d, s%d, v%d" % (vo, t0, sT1, pu6))
            for j in range(1, 4):
                k.I("v_add_u32 v%d, %d, v%d" % (vo + j, (16 * (j >> 1) + 4 * (j & 1)) * stride - 1024 * j, vo))
        k.I("s_waitcnt lgkmcnt(0)")
        ptr = {S_X: (68, 2048 * 512 * 2), S_QKV: (70, 512 * 1536 * 2), S_WO: (72, 512 * 512 * 2),
               S_WIN: (76, 512 * 1792 * 2), S_SP: (78, 2048 * 2048 * 2), S_BSP: (80, 2048 * 2),
               S_WOUT: (82, 896 * 512 * 2), S_GW: (84, 512 * 2), S_OUT: (86, 2048 * 512 * 2), S_WS: (90, WS_SIZE)}
        for s in (S_X, S_WIN, S_QKV, S_SP, S_WS, S_WO, S_BSP, S_WOUT, S_GW, S_OUT):
            src, size = ptr[s]
            if s == S_SP:
                k.I("s_sub_u32 s%d, s%d, 4096" % (s, src))
                k.I("s_subb_u32 s%d, s%d, 0" % (s + 1, src + 1))
                size += 4096
            else:
                k.I("s_mov_b32 s%d, s%d" % (s, src))
                k.I("s_mov_b32 s%d, s%d" % (s + 1, src + 1))
            k.I("s_mov_b32 s%d, 0x%x" % (s + 2, size))
            k.I("s_mov_b32 s%d, 0x20000" % (s + 3))
        self.pro_regs = (u, p, lr, t0, t1, pu, pu6)
        if self.opt.diag is not None:
            pol = self.opt.diag.replace("def", "")
            k.I("s_lshl_b32 s%d, s2, 2" % sT0)
            k.I("s_add_u32 s%d, s%d, s%d" % (sT0, sT0, sW))
            k.I("s_lshl_b32 s%d, s%d, 13" % (sT0, sT0))
            k.I("s_add_u32 s%d, s%d, 4096" % (sT0, sT0))
            k.I("s_add_u32 s%d, s%d, 4096" % (sT1, sT0))
            k.I("v_lshlrev_b32 v%d, 4, v%d" % (vL16, vLane))
            k.I("s_memtime s[94:95]")
            k.I("s_waitcnt lgkmcnt(0)")
            for n in range(8):
                k.I("buffer_load_dwordx4 %s, v%d, %s, s%d offen offset:%d %s" % (V(accA + 4 * n, 4), vL16, srd(S_SP), sT0 + (n >> 2), (n & 3) * 1024, pol))
            k.I("s_waitcnt vmcnt(0)")
            k.I("s_memtime s[96:97]")
            k.I("s_waitcnt lgkmcnt(0)")
            k.I("s_sub_u32 s96, s96, s94")
            k.I("s_lshr_b32 s96, s96, 2")

    def prologue2(self):
        k = self.k
        u, p, lr, t0, t1, pu, pu6 = self.pro_regs
        t2, t3 = vT + 8, vT + 9
        k.I("v_and_b32 v%d, 15, v%d" % (vI, vLane))
        k.I("v_lshrrev_b32 v%d, 4, v%d" % (vG, vLane))
        k.I("v_lshlrev_b32 v%d, 4, v%d" % (vL16, vLane))
        k.I("v_add_u32 v%d, 4096, v%d" % (vL16b, vL16))
        k.I("v_lshlrev_b32 v%d, 3, v%d" % (vL8, vLane))
        k.I("v_mov_b32 v%d, 0" % vZero)
        k.I("s_lshr_b32 s%d, s%d, 1" % (sT0, sW))
        k.I("s_lshl_b32 s%d, s%d, 5" % (sT0, sT0))
        k.I("s_and_b32 s%d, s%d, 1" % (sT1, sW))
        k.I("s_lshl_b32 s%d, s%d, 2" % (sT1, sT1))
        k.I("s_add_u32 s%d, s%d, s%d" % (sT0, sT0, sT1))
        k.I("s_add_u32 s%d, s%d, 1" % (sT0, sT0))
        k.I("v_add_u32 v%d, s%d, v%d" % (t2, sT0, lr))
        k.I("v_lshl_add_u32 v%d, v%d, 12, v%d" % (vSp, t2, pu))
        for j in range(1, 4):
            c = 16 * (j & 1) * 4096 + (j >> 1) * 128 - 1024 * j
            if c >= 0:
                k.I("v_add_u32 v%d, %d, v%d" % (vSp + j, c, vSp))
            else:
                k.I("v_subrev_u32 v%d, %d, v%d" % (vSp + j, -c, vSp))
        k.I("s_lshl_b32 s%d, s%d, 5" % (sT0, sW))
        k.I("v_add_u32 v%d, s%d, v%d" % (t2, sT0, u))
        k.I("v_lshl_add_u32 v%d, v%d, 10, v%d" % (vW3, t2, pu6))
        for j in range(1, 4):
            k.I("v_add_u32 v%d, %d, v%d" % (vW3 + j, (16 * (j & 1) + 8 * (j >> 1)) * 1024 - 1024 * j, vW3))
        k.I("v_bfe_u32 v%d, v%d, 2, 3" % (t2, vLane))
        k.I("v_lshrrev_b32 v%d, 5, v%d" % (t3, vLane))
        k.I("v_lshl_add_u32 v%d, v%d, 4, v%d" % (t3, t3, t2))
        k.I("v_lshlrev_b32 v%d, 7, v%d" % (t3, t3))
        k.I("v_and_b32 v%d, 3, v%d" % (t0, vLane))
        k.I("v_lshl_add_u32 v%d, v%d, 3, v%d" % (t3, t0, t3))
        k.I("v_lshrrev_b32 v%d, 1, v%d" % (t2, t2))
        for cb in range(4):
            k.I("v_xor_b32 v%d, %d, v%d" % (t0, cb, t2))
            k.I("v_lshl_add_u32 v%d, v%d, 5, v%d" % (vTr + cb, t0, t3))
            k.I("v_add_u32 v%d, 0x10000, v%d" % (vTr + 4 + cb, vTr + cb))
            k.I("v_add_u32 v%d, 0x20000, v%d" % (vTr + 8 + cb, vTr + cb))
        k.I("v_and_b32 v%d, 7, v%d" % (t2, vI))
        k.I("v_xor_b32 v%d, v%d, v%d" % (t2, t2, vG))
        k.I("v_lshlrev_b32 v%d, 4, v%d" % (t2, t2))
        k.I("v_lshl_add_u32 v%d, v%d, 7, v%d" % (vRd, vI, t2))
        k.I("v_xor_b32 v%d, 64, v%d" % (vRd + 1, vRd))
        for b in range(1, 3):
            for kk in range(2):
                k.I("v_add_u32 v%d, 0x%x, v%d" % (vRd + 2 * b + kk, b << 16, vRd + kk))
        for n in range(6):
            k.I("v_add_u32 v%d, s%d, v%d" % (vRx + n, sW4k, vRd + n))
        c1 = -2.0 * math.sqrt(2.0 / math.pi) * math.log2(math.e)
        for (vr, val) in ((vC1, c1), (vC2, c1 * 0.044715), (vOne, 1.0), (vL2e, math.log2(math.e)), (vEps, 1e-6)):
            k.I("v_mov_b32 v%d, 0x%x" % (vr, f2u(val)))
            k.I("v_mov_b32 v%d, 0x%x" % (vr + 1, f2u(val)))
        k.vmem("buffer_load_dwordx2 %s, v%d, %s, 0 offen sc1" % (V(vTag, 2), vZero, srd(S_WS)), tag="epoch")

    def tag_setup(self):
        k = self.k
        k.wait(vm="epoch")
        k.I("v_add_u32 v%d, 0x%x, v%d" % (vTag, TAG0_INC, vTag))
        k.I("v_add_u32 v%d, 0x%x, v%d" % (vTag + 1, TAG1_INC, vTag + 1))
        k.I("v_readfirstlane_b32 s%d, v%d" % (sTag0, vTag))
        k.I("v_readfirstlane_b32 s%d, v%d" % (sTag1, vTag + 1))

    def code_prefetch(self):
        if not self.opt.codepf:
            return
        k = self.k
        lab = k.newlabel("pc")
        k.I("s_getpc_b64 s[%d:%d]" % (sT0 + 1, sT0 + 2))
        k.label(lab)
        k.raw("    s_sub_u32 s%d, s%d, %s-%s" % (sT0 + 1, sT0 + 1, lab, NAME))
        k.I("s_subb_u32 s%d, s%d, 0" % (sT0 + 2, sT0 + 2))
        k.I("s_lshr_b32 s%d, s2, 3" % sT0)
        k.I("s_lshl_b32 s%d, s%d, 2" % (sT0, sT0))
        k.I("s_add_u32 s%d, s%d, s%d" % (sT0, sT0, sW))
        k.I("s_lshl_b32 s%d, s%d, 10" % (sT0, sT0))
        k.I("v_and_b32 v%d, 7, v%d" % (vTmpA, vLane))
        k.I("v_lshlrev_b32 v%d, 7, v%d" % (vTmpA, vTmpA))
        k.I("v_add_u32 v%d, s%d, v%d" % (vTmpA, sT0, vTmpA))
        k.raw("    v_min_u32 v%d, L_code_end-%s-4, v%d" % (vTmpA, NAME, vTmpA))
        k.vmem("global_load_dword v%d, v%d, s[%d:%d]" % (vTmpB, vTmpA, sT0 + 1, sT0 + 2))

    def poll_issue(self, dst, voff, soff, imm, tag):
        off = " offset:%d" % imm if imm else ""
        txt = "buffer_load_dwordx2 %s, v%d, %s, %s offen%s sc1" % (V(dst, 2), voff, srd(S_WS), soff, off)
        self.k.vmem(txt, tag=tag)
        return txt

    def poll_check(self, dst, txt, tag, mask_lo=None):
        k = self.k
        k.wait(vm=tag)
        chk = k.newlabel("chk")
        rt = k.newlabel("retry")
        k.label(chk)
        k.I("v_xor_b32 v%d, s%d, v%d" % (vTmpA, sTag0, dst))
        k.I("v_bitop3_b32 v%d, v%d, s%d, v%d bitop3:0xbe" % (vTmpA, dst + 1, sTag1, vTmpA))
        k.I("v_cmp_ne_u32 vcc, 0, v%d" % vTmpA)
        if mask_lo is not None:
            k.I("s_and_b32 s%d, vcc_lo, 0x%x" % (sT3, mask_lo))
            k.I("s_cbranch_scc1 %s" % rt)
        else:
            k.I("s_cbranch_vccnz %s" % rt)
        self.retry_tail(rt, chk, [txt])

    def retry_tail(self, rt, chk, loads):
        k = self.k
        cont = k.newlabel("cont")
        k.label(cont)
        k.tail += [rt + ":", "    s_cmp_eq_u32 s3, 0", "    s_cbranch_scc1 " + cont, "    s_sub_u32 s3, s3, 1", "    s_sleep 1"]
        k.tail += ["    " + t for t in loads] + ["    s_waitcnt vmcnt(0)", "    s_branch " + chk]

    def flag_store(self, soff, after):
        k = self.k
        k.wait(vm=after)
        k.vmem("buffer_store_dwordx2 %s, v%d, %s, %s offen sc1" % (V(vTag, 2), vZero, srd(S_WS), soff))

    def tr_read(self, ring, key, ks, n, buf):
        cb, hh = n >> 1, n & 1
        bank, imm = ring.addr(key, ks * 4096 + hh * 1024)
        dst = vWf + buf * 16 + cb * 4 + hh * 2
        self.k.ds("ds_read_b64_tr_b16 %s, v%d offset:%d" % (V(dst, 2), vTr + bank * 4 + cb, imm), tag=("wf", buf, n))

    def x_read(self, ring, c):
        k = self.k
        key = ("x", c)
        ring.ensure_issued(key)
        k.wait(vm=("dma", key))
        for kk in range(2):
            for b in range(2):
                bank, imm = ring.addr(key, b * 2048)
                dst = ((2 * c + kk) * 2 + b) * 4
                k.ds("ds_read_b128 %s, v%d offset:%d" % (A(dst, 4), vRx + bank * 2 + kk, imm), tag=("xf", c))

    def run_lines(self, ring, lines, first_issue=16):
        k = self.k
        steps = [(li, n) for li in range(len(lines)) for n in range(16)]
        ckey = lambda li, n: ("W:%d" % li, n >> 2)
        self.x_read(ring, 0)
        ring.sync(need=ckey(0, 0), release=[("x", 0)])
        for n in range(8):
            self.tr_read(ring, ckey(0, 0), 0, n, 0)
        for si, (li, n) in enumerate(steps):
            L = lines[li]
            buf = si & 1
            nxt = steps[si + 1] if si + 1 < len(steps) else None
            boundary = (n & 3) == 3
            self.stamp("L%d_%d" % (li, n))
            if li == 0 and n == 10:
                self.tag_setup()
            if n in L.get("hooks", {}):
                L["hooks"][n]()
            xrel = []
            if li == 0 and (n & 1) == 1 and n < 15:
                self.x_read(ring, (n + 1) >> 1)
                xrel = [("x", (n + 1) >> 1)]
            if li == 0 and (n & 1) == 0 and n > 0:
                k.wait(lg=("xf", n >> 1))
                if not ((n - 1) & 3) == 3:
                    ring.release(("x", n >> 1))
            rd = 0
            for m in range(8):
                cb, b = m >> 1, m & 1
                if boundary and m == 4:
                    ring.sync(need=ckey(*nxt) if nxt else None, release=[ckey(li, n)] + xrel)
                if b == 0:
                    k.wait(lg=("wf", buf, 2 * cb + 1))
                acc = L["acc"] + (b * 4 + cb) * 4
                xs = A((n * 2 + b) * 4, 4)
                ws = V(vWf + buf * 16 + cb * 4, 4)
                a_, b_ = (xs, ws) if L["orient"] == "S" else (ws, xs)
                k.I("v_mfma_f32_16x16x32_bf16 %s, %s, %s, %s" % (V(acc, 4), a_, b_, "0" if n == 0 else V(acc, 4)))
                if nxt:
                    cnt = 0 if (boundary and m < 4) else (2 if boundary else 1)
                    for _ in range(cnt):
                        self.tr_read(ring, ckey(*nxt), nxt[1] & 3, rd, buf ^ 1)
                        rd += 1
                if li == 0 and ring.nxt < 12:
                    if m & 1:
                        ring.issue(1)
                elif li == 0:
                    if n >= self.opt.l0next:
                        ring.pace()
                else:
                    ring.pace()
            if n == 15:
                L["epi"]()

    def gelu(self, ring, acc, scale_pairs=None):
        k = self.k
        for grp in range(4):
            ps = [acc + grp * 8 + 2 * q for q in range(4)]
            ts = [vT + 2 * q for q in range(4)]
            for x, t in zip(ps, ts):
                k.I("v_pk_mul_f32 %s, %s, %s" % (V(t, 2), V(x, 2), V(x, 2)))
            for x, t in zip(ps, ts):
                k.I("v_pk_fma_f32 %s, %s, %s, %s" % (V(t, 2), V(t, 2), V(vC2, 2), V(vC1, 2)))
            for x, t in zip(ps, ts):
                k.I("v_pk_mul_f32 %s, %s, %s" % (V(t, 2), V(t, 2), V(x, 2)))
            ring.pace()
            for t in range(vT, vT + 8):
                k.I("v_exp_f32 v%d, v%d" % (t, t))
            ring.pace()
            for x, t in zip(ps, ts):
                k.I("v_pk_add_f32 %s, %s, %s" % (V(t, 2), V(t, 2), V(vOne, 2)))
            for t in range(vT, vT + 8):
                k.I("v_rcp_f32 v%d, v%d" % (t, t))
            ring.pace()
            for x, t in zip(ps, ts):
                k.I("v_pk_mul_f32 %s, %s, %s" % (V(x, 2), V(x, 2), V(t, 2)))

    def phi(self, ring, acc):
        k = self.k
        for grp in range(4):
            ps = [acc + grp * 8 + 2 * q for q in range(4)]
            ts = [vT + 2 * q for q in range(4)]
            for x, t in zip(ps, ts):
                k.I("v_pk_mul_f32 %s, %s, %s" % (V(t, 2), V(x, 2), V(vL2e, 2)))
            for t in range(vT, vT + 8):
                k.I("v_exp_f32_e64 v%d, v%d clamp" % (t, t))
            ring.pace()
            for x in range(acc + grp * 8, acc + grp * 8 + 8):
                k.I("v_max_f32 v%d, 0, v%d" % (x, x))
            for x, t in zip(ps, ts):
                k.I("v_pk_add_f32 %s, %s, %s" % (V(x, 2), V(x, 2), V(t, 2)))
            for x, t in zip(ps, ts):
                k.I("v_pk_add_f32 %s, %s, %s" % (V(x, 2), V(x, 2), V(vEps, 2)))
            ring.pace()

    def pack_S(self, acc, dst):
        for cb in range(4):
            for b in range(2):
                for h in range(2):
                    s = acc + (b * 4 + cb) * 4 + 2 * h
                    self.k.I("v_cvt_pk_bf16_f32 v%d, v%d, v%d" % (dst + cb * 4 + b * 2 + h, s, s + 1))

    def pack_F(self, acc, dst):
        for q in range(16):
            self.k.I("v_cvt_pk_bf16_f32 v%d, v%d, v%d" % (dst + q, acc + 2 * q, acc + 2 * q + 1))

    def epi_z2_stats(self, ring):
        k = self.k
        acc = accA
        self.stamp(1)
        self.gelu(ring, acc)
        S, Q = vT + 8, vT + 16
        y = lambda b, cb, h: acc + (b * 4 + cb) * 4 + 2 * h
        for b in range(2):
            for h in range(2):
                k.I("v_pk_add_f32 %s, %s, %s" % (V(S + b * 4 + 2 * h, 2), V(y(b, 0, h), 2), V(y(b, 1, h), 2)))
                k.I("v_pk_mul_f32 %s, %s, %s" % (V(Q + b * 4 + 2 * h, 2), V(y(b, 0, h), 2), V(y(b, 0, h), 2)))
        for cb in range(1, 4):
            for b in range(2):
                for h in range(2):
                    if cb > 1:
                        k.I("v_pk_add_f32 %s, %s, %s" % (V(S + b * 4 + 2 * h, 2), V(S + b * 4 + 2 * h, 2), V(y(b, cb, h), 2)))
                    k.I("v_pk_fma_f32 %s, %s, %s, %s" % (V(Q + b * 4 + 2 * h, 2), V(y(b, cb, h), 2), V(y(b, cb, h), 2), V(Q + b * 4 + 2 * h, 2)))
            ring.pace()
        dpp = lambda d, s, ctl, bm: k.I("v_add_f32_dpp v%d, v%d, v%d %s row_mask:0xf bank_mask:0x%x" % (d, s, s, ctl, bm))
        for X in (S, Q):
            for r in range(4):
                dpp(X + r, X + r, "row_ror:8", 0x3)
        for X in (S, Q):
            for r in range(4):
                dpp(X + r, X + 4 + r, "row_ror:8", 0xc)
        ring.pace()
        for X in (S, Q):
            for r in range(2):
                dpp(X + r, X + r, "row_half_mirror", 0x5)
        for X in (S, Q):
            for r in range(2):
                dpp(X + r, X + 2 + r, "row_half_mirror", 0xa)
        for ctl in ("quad_perm:[1,0,3,2]", "quad_perm:[2,3,0,1]"):
            for X in (S, Q):
                for r in range(2):
                    dpp(X + r, X + r, ctl, 0xf)
        t = vT
        k.I("v_and_b32 v%d, 1, v%d" % (t, vLane))
        k.I("v_cmp_eq_u32 vcc, 1, v%d" % t)
        k.I("v_lshrrev_b32 v%d, 2, v%d" % (t + 1, vLane))
        k.I("v_lshl_add_u32 v%d, v%d, 1, v%d" % (t + 1, t + 1, t))
        k.I("v_lshlrev_b32 v%d, 4, v%d" % (t + 1, t + 1))
        k.I("v_cndmask_b32 v%d, v%d, v%d, vcc" % (vGr, S, S + 1))
        k.I("v_cndmask_b32 v%d, v%d, v%d, vcc" % (vGr + 1, Q, Q + 1))
        k.I("s_mul_i32 s%d, s%d, %d" % (sBase, sPart, 14 * 512))
        k.I("s_add_u32 s%d, s%d, %d" % (sBase, sBase, WS_STATS))
        k.I("s_lshl_b32 s%d, s%d, 9" % (sT0, sR))
        k.I("s_add_u32 s%d, s%d, s%d" % (sT0, sT0, sBase))
        k.vmem("buffer_store_dwordx4 %s, v%d, %s, s%d offen sc1" % (V(vGr, 4), t + 1, srd(S_WS), sT0))
        self.stamp(2)

    ST = vT + 24
    STA = vT + 52

    def stats_issue(self):
        k = self.k
        a = self.STA
        k.I("v_and_b32 v%d, 7, v%d" % (a, vI))
        k.I("v_lshl_add_u32 v%d, v%d, 3, v%d" % (a, vG, a))
        k.I("v_lshlrev_b32 v%d, 4, v%d" % (a, a))
        k.I("v_lshrrev_b32 v%d, 3, v%d" % (a + 1, vI))
        k.I("v_lshl_add_u32 v%d, v%d, 9, v%d" % (a, a + 1, a))
        k.I("v_add_u32 v%d, 4096, v%d" % (a + 1, a))
        self.stats_txt = []
        for n in range(7):
            off = " offset:%d" % ((n & 3) * 1024) if n & 3 else ""
            txt = "buffer_load_dwordx4 %s, v%d, %s, s%d offen%s sc1" % (V(self.ST + 4 * n, 4), a + (n >> 2), srd(S_WS), sBase, off)
            self.stats_txt.append(txt)
            k.vmem(txt, tag="stats" if n == 6 else None)

    def normalize_publish(self, ring):
        k = self.k
        acc, ST = accA, self.ST
        self.stamp(3)
        k.wait(vm="stats")
        chk, rt = k.newlabel("chk"), k.newlabel("retry")
        k.label(chk)
        k.I("v_xor_b32 v%d, s%d, v%d" % (vTmpA, sTag0, ST + 2))
        k.I("v_xor_b32 v%d, s%d, v%d" % (vTmpB, sTag1, ST + 3))
        for n in range(1, 7):
            k.I("v_bitop3_b32 v%d, v%d, s%d, v%d bitop3:0xbe" % (vTmpA, ST + 4 * n + 2, sTag0, vTmpA))
            k.I("v_bitop3_b32 v%d, v%d, s%d, v%d bitop3:0xbe" % (vTmpB, ST + 4 * n + 3, sTag1, vTmpB))
        k.I("v_or_b32 v%d, v%d, v%d" % (vTmpA, vTmpA, vTmpB))
        k.I("v_cmp_ne_u32 vcc, 0, v%d" % vTmpA)
        k.I("s_cbranch_vccnz %s" % rt)
        self.retry_tail(rt, chk, self.stats_txt)
        self.stamp(4)
        for (d, s) in ((0, 1), (2, 3), (4, 5), (0, 2), (4, 6), (0, 4)):
            k.I("v_pk_add_f32 %s, %s, %s" % (V(ST + 4 * d, 2), V(ST + 4 * d, 2), V(ST + 4 * s, 2)))
        k.I("v_add_f32_dpp v%d, v%d, v%d row_ror:8 row_mask:0xf bank_mask:0xf" % (ST, ST, ST))
        k.I("v_add_f32_dpp v%d, v%d, v%d row_ror:8 row_mask:0xf bank_mask:0xf" % (ST + 1, ST + 1, ST + 1))
        mean, var, rs, nm = ST + 4, ST + 5, ST + 6, ST + 7
        k.I("v_mul_f32 v%d, 0x%x, v%d" % (mean, f2u(1.0 / 896), ST))
        k.I("v_mul_f32 v%d, 0x%x, v%d" % (var, f2u(1.0 / 896), ST + 1))
        k.I("v_fma_f32 v%d, -v%d, v%d, v%d" % (var, mean, mean, var))
        k.I("v_max_f32 v%d, 0, v%d" % (var, var))
        k.I("v_add_f32 v%d, 0x%x, v%d" % (var, f2u(1e-5), var))
        k.I("v_rsq_f32 v%d, v%d" % (rs, var))
        k.I("v_mul_f32_e64 v%d, -v%d, v%d" % (nm, mean, rs))
        R, NM = vT, vT + 8
        for q in range(8):
            k.I("v_mov_b32_dpp v%d, v%d row_newbcast:%d row_mask:0xf bank_mask:0xf" % (R + q, rs, q))
        for q in range(8):
            k.I("v_mov_b32_dpp v%d, v%d row_newbcast:%d row_mask:0xf bank_mask:0xf" % (NM + q, nm, q))
        ring.pace()
        for cb in range(4):
            for b in range(2):
                for h in range(2):
                    y = acc + (b * 4 + cb) * 4 + 2 * h
                    k.I("v_pk_fma_f32 %s, %s, %s, %s" % (V(y, 2), V(y, 2), V(R + 4 * b + 2 * h, 2), V(NM + 4 * b + 2 * h, 2)))
        P = ST + 8
        self.pack_S(acc, P)
        k.I("s_lshl_b32 s%d, s%d, 18" % (sT0, sR))
        k.I("s_lshl_b32 s%d, s%d, 11" % (sT1, sPart))
        k.I("s_add_u32 s%d, s%d, s%d" % (sT0, sT0, sT1))
        k.I("s_add_u32 s%d, s%d, %d" % (sT0, sT0, WS_Z2N))
        k.I("s_add_u32 s%d, s%d, %d" % (sT1, sT0, 131072))
        for cb in range(4):
            off = " offset:1024" if cb & 1 else ""
            k.vmem("buffer_store_dwordx4 %s, v%d, %s, s%d offen%s sc1" % (V(P + cb * 4, 4), vL16, srd(S_WS), sT0 + (cb >> 1), off),
                   tag="z2n_st" if cb == 3 else None)
        self.stamp(5)

    def z2n_flag(self):
        k = self.k
        k.I("s_lshl_b32 s%d, s%d, 9" % (sT0, sR))
        k.I("s_lshl_b32 s%d, s%d, 3" % (sT1, sPart))
        k.I("s_add_u32 s%d, s%d, s%d" % (sT0, sT0, sT1))
        k.I("s_add_u32 s%d, s%d, %d" % (sT0, sT0, WS_FZ))
        self.flag_store("s%d" % sT0, "z2n_st")

    def epi_kv(self, ring, accK, accV, pk=None):
        k = self.k
        if pk is None:
            self.phi(ring, accK)
            pk = vT + 8
            self.pack_S(accK, pk)
        pv = vT + 24
        self.pack_S(accV, pv)
        ind = vT + 40
        D = accK
        k.I("v_mov_b32 v%d, 0x3f803f80" % (vT + 44))
        for cb in range(4):
            k.I("v_cmp_eq_u32 vcc, %d, v%d" % (cb, vI))
            for q in range(4):
                k.I("v_cndmask_b32 v%d, v%d, v%d, vcc" % (ind + q + (cb & 1) * 8, vZero, vT + 44))
            k.I("v_mfma_f32_16x16x32_bf16 %s, %s, %s, 0" % (V(D + cb * 4, 4), V(pk + cb * 4, 4), V(pv + cb * 4, 4)))
            k.I("v_mfma_f32_16x16x32_bf16 %s, %s, %s, %s" % (V(D + 16, 4), V(pk + cb * 4, 4), V(ind + (cb & 1) * 8, 4), "0" if cb == 0 else V(D + 16, 4)))
        k.I("s_lshl_b32 s%d, s%d, 18" % (sT0, sJJ))
        k.I("s_lshl_b32 s%d, s%d, 10" % (sT1, sPart))
        k.I("s_add_u32 s%d, s%d, s%d" % (sT0, sT0, sT1))
        k.I("s_add_u32 s%d, s%d, %d" % (sT0, sT0, WS_KVP))
        za = vT + 45
        k.I("v_lshl_add_u32 v%d, v%d, 2, v%d" % (za, vI, vG))
        k.I("v_lshlrev_b32 v%d, 4, v%d" % (za, za))
        k.I("v_cmp_gt_u32 vcc, 4, v%d" % vI)
        k.I("v_mov_b32 v%d, 0x%x" % (za + 1, WS_SIZE))
        k.I("v_cndmask_b32 v%d, v%d, v%d, vcc" % (za, za + 1, za))
        for cb in range(4):
            k.vmem("buffer_store_dwordx4 %s, v%d, %s, s%d offen sc1" % (V(D + cb * 4, 4), vL16, srd(S_WS), sT0))
            if cb < 3:
                k.I("s_add_u32 s%d, s%d, 65536" % (sT0, sT0))
        k.I("s_lshl_b32 s%d, s%d, 14" % (sT0, sJJ))
        k.I("s_lshl_b32 s%d, s%d, 8" % (sT1, sPart))
        k.I("s_add_u32 s%d, s%d, s%d" % (sT0, sT0, sT1))
        k.I("s_add_u32 s%d, s%d, %d" % (sT0, sT0, WS_ZP))
        k.vmem("buffer_store_dwordx4 %s, v%d, %s, s%d offen sc1" % (V(D + 16, 4), za, srd(S_WS), sT0), tag="pub_st")
        k.I("s_lshl_b32 s%d, s%d, 9" % (sFlagOff, sJJ))
        k.I("s_lshl_b32 s%d, s%d, 3" % (sT1, sPart))
        k.I("s_add_u32 s%d, s%d, s%d" % (sFlagOff, sFlagOff, sT1))
        k.I("s_add_u32 s%d, s%d, %d" % (sFlagOff, sFlagOff, WS_FKV))

    def epi_z1(self, ring, acc, half):
        k = self.k
        self.gelu(ring, acc)
        P = vT + 8
        self.pack_F(acc, P)
        k.I("s_mul_i32 s%d, s%d, %d" % (sT0, sPart, 2 * 28 * 1024))
        k.I("s_lshl_b32 s%d, s%d, 12" % (sT1, sJJ))
        k.I("s_add_u32 s%d, s%d, s%d" % (sT0, sT0, sT1))
        k.I("s_add_u32 s%d, s%d, %d" % (sT0, sT0, WS_Z1 + half * 2048))
        k.I("s_add_u32 s%d, s%d, %d" % (sT1, sT0, 28 * 1024))
        for b in range(2):
            for pr in range(2):
                off = " offset:1024" if pr else ""
                k.vmem("buffer_store_dwordx4 %s, v%d, %s, s%d offen%s sc1" % (V(P + b * 8 + pr * 4, 4), vL16, srd(S_WS), sT0 + b, off),
                       tag="pub_st")
        if half == 1:
            k.I("s_lshl_b32 s%d, s%d, 3" % (sFlagOff, sT128))
            k.I("s_add_u32 s%d, s%d, s%d" % (sFlagOff, sFlagOff, sJJ))
            k.I("s_lshl_b32 s%d, s%d, 7" % (sFlagOff, sFlagOff))
            k.I("s_lshl_b32 s%d, s%d, 3" % (sT1, sW))
            k.I("s_add_u32 s%d, s%d, s%d" % (sFlagOff, sFlagOff, sT1))
            k.I("s_add_u32 s%d, s%d, %d" % (sFlagOff, sFlagOff, WS_FZ1))

    @staticmethod
    def stream(lines, main):
        ch = []
        for c in range(4):
            ch += [("x", 2 * c, None), ("W:0", c, lines[0]), ("x", 2 * c + 1, None)]
        for li in range(1, len(lines)):
            ch += [("W:%d" % li, c, lines[li]) for c in range(4)]
        if main:
            ch += [("sp", c, None) for c in range(16)]
        ch += [("wo", c, None) for c in range(4)]
        ch += [("wout", c, None) for c in range(7)]
        return ch

    def start_role(self, lines, main):
        ring = Ring(self.k, self.opt, self.stream(lines, main))
        ring.issue(self.opt.first)
        self.code_prefetch()
        self.prologue2()
        self.stamp(0)
        return ring

    def role_main(self, ab):
        k = self.k
        z2 = ("win", sR, 128, 1792)
        if ab == 0:
            wl = [z2, ("qkv", sJJ, 128, 1024), ("qkv", sJJ, 128, 2048)]
        else:
            wl = [z2, ("win", sJJ, 256, 0), ("win", sJJ, 256, 128)]
        ring = self.start_role(wl, True)
        ring.limit = 20 + 16
        o = "S" if ab == 0 else "F"

        def epi3():
            self.stamp(6)
            if ab == 0:
                self.epi_kv(ring, accB, accC)
            else:
                self.epi_z1(ring, accB, 0)
                self.epi_z1(ring, accC, 1)
        lines = [dict(orient="S", acc=accA, epi=lambda: self.epi_z2_stats(ring)),
                 dict(orient=o, acc=accB, epi=lambda: self.normalize_publish(ring), hooks={11: self.stats_issue}),
                 dict(orient=o, acc=accC, epi=epi3, hooks={6: self.z2n_flag})]
        self.run_lines(ring, lines)
        ring.flush()
        return ring

    def phase2(self, ring):
        k, D = self.k, self.opt.zdepth
        Zs = 128
        acc = accA
        Bq = accB
        Z1 = accC
        FL = vT
        self.stamp(7)
        k.I("s_lshr_b32 s%d, s%d, 1" % (sT0, sW))
        k.I("s_lshl_b32 s%d, s%d, 1" % (sT1, sJJ))
        k.I("s_add_u32 s%d, s%d, s%d" % (sT0, sT0, sT1))
        k.I("s_lshl_b32 s%d, s%d, 9" % (sT0, sT0))
        k.I("s_add_u32 s%d, s%d, %d" % (sT2, sT0, WS_FZ))
        txt = self.poll_issue(FL, vL8, "s%d" % sT2, 0, "fz")
        t = vT + 2
        k.I("v_lshrrev_b32 v%d, 2, v%d" % (t, vI))
        k.I("v_and_b32 v%d, 3, v%d" % (t + 1, vI))
        k.I("v_lshl_add_u32 v%d, v%d, 3, v%d" % (t, t, t + 1))
        k.I("v_lshlrev_b32 v%d, 1, v%d" % (t, t))
        k.I("s_lshl_b32 s%d, s%d, 7" % (sT0, sT64))
        for tb in range(4):
            o = (32 * (tb >> 1) + 4 * (tb & 1)) * 2
            k.vmem("buffer_load_ushort v%d, v%d, %s, s%d offen%s" % (Bq + tb * 4, t, srd(S_BSP), sT0, " offset:%d" % o if o else ""), tag="bias")
        k.I("s_lshl_b32 s%d, s%d, 2" % (sBase, sJJ))
        k.I("s_add_u32 s%d, s%d, s%d" % (sBase, sBase, sW))
        k.I("s_lshl_b32 s%d, s%d, 17" % (sBase, sBase))
        k.I("s_add_u32 s%d, s%d, %d" % (sBase, sBase, WS_Z2N))
        self.poll_check(FL, txt, "fz")
        self.stamp(8)

        def zload(n, fb):
            if (n & 3) == 0 and fb == 0:
                k.I("s_add_u32 s%d, s%d, %d" % (sZoff, sRot2, n >> 2))
                k.I("s_and_b32 s%d, s%d, 15" % (sZoff, sZoff))
                k.I("s_lshl_b32 s%d, s%d, 13" % (sZoff, sZoff))
                k.I("s_add_u32 s%d, s%d, s%d" % (sZoff, sZoff, sBase))
            o = (n & 3) * 2048 + fb * 1024
            vo = vL16b if o >= 4096 else vL16
            o &= 4095
            k.vmem("buffer_load_dwordx4 %s, v%d, %s, s%d offen%s sc1" % (A(Zs + ((n % D) * 2 + fb) * 4, 4), vo, srd(S_WS), sZoff, " offset:%d" % o if o else ""),
                   tag=("z", n, fb))

        def aread(n, tb):
            key = ("sp", n >> 2)
            ks = n & 3
            bank, imm = ring.addr(key, tb * 4096 + (ks >> 1) * 2048)
            k.ds("ds_read_b128 %s, v%d offset:%d" % (V(vWf + (n & 1) * 16 + tb * 4, 4), vRd + bank * 2 + (ks & 1), imm), tag=("af", n & 1, tb))

        for n in range(D - 1):
            zload(n, 0)
            zload(n, 1)
        self.flag_store("s%d" % sFlagOff, "pub_st")
        k.wait(vm="bias")
        for tb in range(4):
            k.I("v_lshlrev_b32 v%d, 16, v%d" % (Bq + tb * 4, Bq + tb * 4))
        for tb in range(4):
            for q in range(1, 4):
                k.I("v_mov_b32 v%d, v%d" % (Bq + tb * 4 + q, Bq + tb * 4))
        ring.sync(need=("sp", 0))
        for tb in range(4):
            aread(0, tb)
        hooks = {}

        def z1_poll():
            k.I("s_lshl_b32 s%d, s%d, 3" % (sT2, sT128))
            k.I("s_add_u32 s%d, s%d, s%d" % (sT2, sT2, sJJ))
            k.I("s_lshl_b32 s%d, s%d, 7" % (sT2, sT2))
            k.I("s_add_u32 s%d, s%d, %d" % (sT2, sT2, WS_FZ1))
            k.I("v_and_b32 v%d, 24, v%d" % (FL + 2, vL8))
            self.z1txt = self.poll_issue(FL, FL + 2, "s%d" % sT2, 0, "fz1")

        def z1_load():
            self.poll_check(FL, self.z1txt, "fz1")
            k.I("s_mul_i32 s%d, s%d, %d" % (sT0, sT64, 4 * 28 * 1024))
            k.I("s_lshl_b32 s%d, s%d, 2" % (sT1, sJJ))
            k.I("s_add_u32 s%d, s%d, s%d" % (sT1, sT1, sW))
            k.I("s_lshl_b32 s%d, s%d, 10" % (sT1, sT1))
            k.I("s_add_u32 s%d, s%d, s%d" % (sT0, sT0, sT1))
            k.I("s_add_u32 s%d, s%d, %d" % (sT0, sT0, WS_Z1))
            for tb in range(4):
                k.vmem("buffer_load_dwordx4 %s, v%d, %s, s%d offen sc1" % (V(Z1 + tb * 4, 4), vL16, srd(S_WS), sT0), tag="z1")
                if tb < 3:
                    k.I("s_add_u32 s%d, s%d, %d" % (sT0, sT0, 28 * 1024))

        def z1_unpack(tb):
            k.wait(vm="z1")
            for q in range(4):
                fb, h = q >> 1, q & 1
                d = accB + (fb * 4 + tb) * 4 + 2 * h
                k.I("v_lshlrev_b32 v%d, 16, v%d" % (d, Z1 + tb * 4 + q))
                k.I("v_and_b32 v%d, 0xffff0000, v%d" % (d + 1, Z1 + tb * 4 + q))
        hooks[28] = z1_poll
        hooks[38] = z1_load
        for tb in range(4):
            hooks[49 + tb] = (lambda tb=tb: z1_unpack(tb))
        hooks[64 - D + 1] = lambda: setattr(ring, "limit", 36 + 4)
        for n in range(64):
            boundary = (n & 3) == 3
            self.stamp("P2_%d" % n)
            if n in hooks:
                hooks[n]()
            k.wait(vm=("z", n, 1))
            rd = 0
            for m in range(8):
                tb, fb = m >> 1, m & 1
                if boundary and m == 4:
                    ring.sync(need=("sp", (n + 1) >> 2) if n < 63 else None, release=[("sp", n >> 2)])
                if fb == 0:
                    k.wait(lg=("af", n & 1, tb))
                d = acc + (fb * 4 + tb) * 4
                k.I("v_mfma_f32_16x16x32_bf16 %s, %s, %s, %s" % (V(d, 4), A(Zs + ((n % D) * 2 + fb) * 4, 4), V(vWf + (n & 1) * 16 + tb * 4, 4),
                                                                V(Bq + tb * 4, 4) if n == 0 else V(d, 4)))
                if n < 63:
                    if (boundary and m >= 4) or (not boundary and (m & 1) == 0):
                        aread(n + 1, rd)
                        rd += 1
                nn = n + D - 1
                if m in (1, 3) and nn < 64:
                    zload(nn, m >> 1)
                if m == 5 or (nn >= 64 and m in (1, 3)):
                    ring.issue(1)
        self.stamp(9)
        P = accC
        for fb in range(2):
            for tb in range(4):
                for h in range(2):
                    d = acc + (fb * 4 + tb) * 4 + 2 * h
                    k.I("v_pk_mul_f32 %s, %s, %s" % (V(d, 2), V(d, 2), V(accB + (fb * 4 + tb) * 4 + 2 * h, 2)))
        k.I("s_mul_i32 s%d, s%d, %d" % (sT0, sT64, 4 * 44 * 1024))
        k.I("s_lshl_b32 s%d, s%d, 2" % (sT1, sJJ))
        k.I("s_add_u32 s%d, s%d, s%d" % (sT1, sT1, sW))
        k.I("s_lshl_b32 s%d, s%d, 3" % (sFlagOff, sT1))
        k.I("s_lshl_b32 s%d, s%d, 10" % (sT1, sT1))
        k.I("s_add_u32 s%d, s%d, s%d" % (sT0, sT0, sT1))
        k.I("s_add_u32 s%d, s%d, %d" % (sT0, sT0, WS_A3 + 16 * 1024))
        for tb in range(4):
            for fb in range(2):
                for h in range(2):
                    d = acc + (fb * 4 + tb) * 4 + 2 * h
                    k.I("v_cvt_pk_bf16_f32 v%d, v%d, v%d" % (P + tb * 4 + fb * 2 + h, d, d + 1))
            k.vmem("buffer_store_dwordx4 %s, v%d, %s, s%d offen sc1" % (V(P + tb * 4, 4), vL16, srd(S_WS), sT0), tag="pub_st")
            if tb < 3:
                k.I("s_add_u32 s%d, s%d, %d" % (sT0, sT0, 44 * 1024))
        k.I("s_lshl_b32 s%d, s%d, 8" % (sT1, sT64))
        k.I("s_add_u32 s%d, s%d, s%d" % (sFlagOff, sFlagOff, sT1))
        k.I("s_add_u32 s%d, s%d, %d" % (sFlagOff, sFlagOff, WS_FH))

    def phase3(self, ring):
        k = self.k
        FL = vT
        accO, accH = accA, accA + 16
        ring.limit = len(ring.chunks)
        k.I("s_lshl_b32 s%d, s%d, 8" % (sT2, sT64))
        k.I("s_add_u32 s%d, s%d, %d" % (sT2, sT2, WS_FH))
        k.I("v_and_b32 v%d, 0xf8, v%d" % (FL + 2, vL8))
        ring.issue(6)
        self.flag_store("s%d" % sFlagOff, "pub_st")
        self.stamp(10)
        txt = self.poll_issue(FL, FL + 2, "s%d" % sT2, 0, "fo")
        k.I("s_lshl_b32 s%d, s%d, 2" % (sBase, sT64))
        k.I("s_add_u32 s%d, s%d, s%d" % (sBase, sBase, sW))
        k.I("s_lshl_b32 s%d, s%d, 6" % (sT0, sBase))
        k.I("s_mul_i32 s%d, s%d, %d" % (sBase, sBase, 44 * 1024))
        k.I("s_add_u32 s%d, s%d, %d" % (sBase, sBase, WS_A3))
        k.I("s_add_u32 s%d, s%d, %d" % (sT0, sT0, WS_GATE))
        ring.issue(6)
        self.poll_check(FL, txt, "fo", mask_lo=0xf0000000)
        self.stamp(11)
        gt = vT + 4
        k.I("v_lshlrev_b32 v%d, 2, v%d" % (gt + 1, vI))
        k.vmem("buffer_load_dword v%d, v%d, %s, s%d offen sc1" % (gt, gt + 1, srd(S_WS), sT0), tag="gate")

        def aload(part, c):
            if part == 0:
                k.I("s_add_u32 s%d, s%d, %d" % (sZoff, sRot3a, c))
                k.I("s_and_b32 s%d, s%d, 3" % (sZoff, sZoff))
            else:
                rot7(k, sZoff, c)
                k.I("s_add_u32 s%d, s%d, 4" % (sZoff, sZoff))
            k.I("s_lshl_b32 s%d, s%d, 12" % (sZoff, sZoff))
            k.I("s_add_u32 s%d, s%d, s%d" % (sZoff, sZoff, sBase))
            for q in range(4):
                n = (part * 4 + c) * 4 + q
                k.vmem("buffer_load_dwordx4 %s, v%d, %s, s%d offen%s sc1" % (A(n * 4, 4), vL16, srd(S_WS), sZoff, " offset:%d" % (q * 1024) if q else ""),
                       tag=("a3", n))
        for c in range(4):
            aload(0, c)
        ring.flush()
        ckey = lambda n: ("wo", n >> 2) if n < 16 else ("wout", (n - 16) >> 2)
        ring.sync(need=ckey(0))
        for q in range(8):
            self.tr_read(ring, ckey(0), 0, q, 0)
        for n in range(44):
            buf = n & 1
            boundary = (n & 3) == 3
            if n == 12:
                self.htxt = self.poll_issue(FL, FL + 2, "s%d" % sT2, 0, "fh")
            if n == 16:
                self.stamp(12)
                self.poll_check(FL, self.htxt, "fh", mask_lo=0x0fffffff)
                self.stamp(13)
                for c in range(7):
                    aload(1, c)
            self.stamp("P3_%d" % n)
            k.wait(vm=("a3", n))
            acc = accO if n < 16 else accH
            rd = 0
            for nb in range(4):
                if boundary and nb == 2:
                    ring.sync(need=ckey(n + 1) if n < 43 else None, release=[ckey(n)])
                    ring.flush()
                k.wait(lg=("wf", buf, 2 * nb + 1))
                d = acc + nb * 4
                k.I("v_mfma_f32_16x16x32_bf16 %s, %s, %s, %s" % (V(d, 4), V(vWf + buf * 16 + nb * 4, 4), A(n * 4, 4), "0" if n in (0, 16) else V(d, 4)))
                if n < 43:
                    cnt = (0 if nb < 2 else 4) if boundary else 2
                    for _ in range(cnt):
                        self.tr_read(ring, ckey(n + 1), (n + 1) & 3, rd, buf ^ 1)
                        rd += 1
        self.stamp(14)
        k.wait(vm="gate")
        k.I("v_mov_b32 v%d, v%d" % (gt + 1, gt))
        for q in range(8):
            k.I("v_pk_add_f32 %s, %s, %s neg_lo:[0,1] neg_hi:[0,1]" % (V(accO + 2 * q, 2), V(accO + 2 * q, 2), V(accH + 2 * q, 2)))
        for q in range(8):
            k.I("v_pk_fma_f32 %s, %s, %s, %s" % (V(accO + 2 * q, 2), V(accO + 2 * q, 2), V(gt, 2), V(accH + 2 * q, 2)))
        P = accB
        for q in range(8):
            k.I("v_cvt_pk_bf16_f32 v%d, v%d, v%d" % (P + q, accO + 2 * q, accO + 2 * q + 1))
        wa, ra, ga = vT + 8, vT + 9, vT + 10
        k.I("v_mul_u32_u24 v%d, 144, v%d" % (wa, vI))
        k.I("v_lshl_add_u32 v%d, v%d, 3, v%d" % (wa, vG, wa))
        k.I("v_add_u32 v%d, s%d, v%d" % (wa, sW4k, wa))
        slot = ring.free[0] * 16384
        k.I("v_add_u32 v%d, %d, v%d" % (wa, slot, wa))
        for nb in range(4):
            k.ds("ds_write_b64 v%d, %s offset:%d" % (wa, V(P + 2 * nb, 2), nb * 32))
        u, p = vT + 11, vT + 12
        k.I("v_lshrrev_b32 v%d, 3, v%d" % (u, vLane))
        k.I("v_and_b32 v%d, 7, v%d" % (p, vLane))
        k.I("v_mul_u32_u24 v%d, 144, v%d" % (ra, u))
        k.I("v_lshl_add_u32 v%d, v%d, 4, v%d" % (ra, p, ra))
        k.I("v_add_u32 v%d, s%d, v%d" % (ra, sW4k, ra))
        k.I("v_add_u32 v%d, %d, v%d" % (ra, slot, ra))
        k.I("v_lshrrev_b32 v%d, 2, v%d" % (ga, u))
        k.I("v_and_b32 v%d, 3, v%d" % (u, u))
        k.I("v_lshl_add_u32 v%d, v%d, 3, v%d" % (ga, ga, u))
        k.I("v_lshlrev_b32 v%d, 10, v%d" % (ga, ga))
        k.I("v_lshl_add_u32 v%d, v%d, 4, v%d" % (ga, p, ga))
        k.I("s_lshl_b32 s%d, s%d, 6" % (sT0, sT64))
        k.I("s_lshr_b32 s%d, s%d, 1" % (sT1, sW))
        k.I("s_lshl_b32 s%d, s%d, 5" % (sT1, sT1))
        k.I("s_add_u32 s%d, s%d, s%d" % (sT0, sT0, sT1))
        k.I("s_and_b32 s%d, s%d, 1" % (sT1, sW))
        k.I("s_lshl_b32 s%d, s%d, 2" % (sT1, sT1))
        k.I("s_add_u32 s%d, s%d, s%d" % (sT0, sT0, sT1))
        k.I("s_lshl_b32 s%d, s%d, 10" % (sT0, sT0))
        k.I("s_lshl_b32 s%d, s%d, 7" % (sT1, sJJ))
        k.I("s_add_u32 s%d, s%d, s%d" % (sT0, sT0, sT1))
        k.I("s_add_u32 s%d, s%d, %d" % (sT1, sT0, 16 * 1024))
        k.wait(lg="all")
        for j in range(2):
            k.ds("ds_read_b128 %s, v%d offset:%d" % (V(P + 8 + 4 * j, 4), ra, j * 8 * 144), tag=("o", j))
        for j in range(2):
            k.wait(lg=("o", j))
            k.vmem("buffer_store_dwordx4 %s, v%d, %s, s%d offen" % (V(P + 8 + 4 * j, 4), ga, srd(S_OUT), sT0 + j))
        self.stamp(15)
        self.dump_stamps()
        if self.opt.spin:
            lab = k.newlabel("spin")
            skip = k.newlabel("nospin")
            if self.opt.spinwg >= 0:
                k.I("s_cmp_lg_u32 s2, %d" % self.opt.spinwg)
                k.I("s_cbranch_scc1 %s" % skip)
            k.label(lab)
            k.I("s_memrealtime s[8:9]")
            k.I("s_waitcnt lgkmcnt(0)")
            k.I("s_sub_u32 s8, s8, s100")
            if self.opt.diag is not None:
                k.I("s_sub_u32 s8, s8, s96")
                k.I("s_cmp_lt_i32 s8, %d" % self.opt.spin)
            elif self.opt.expose is not None:
                k.I("s_sub_u32 s9, s%d, s98" % (sStamp0 + 2 * self.opt.expose))
                k.I("s_lshr_b32 s9, s9, 2")
                k.I("s_sub_u32 s8, s8, s9")
                k.I("s_cmp_lt_i32 s8, %d" % self.opt.spin)
            else:
                k.I("s_cmp_lt_u32 s8, %d" % self.opt.spin)
            k.I("s_cbranch_scc1 %s" % lab)
            k.label(skip)

    def role_spare(self, s):
        k = self.k
        PQ = [100, 116, 164, 180, 212]
        if s == 0:
            wl = [("qkv", None, 0, 1024 + 7 * 128), ("qkv", None, 0, 2048 + 7 * 128)] + [("qkv", None, 0, L * 128) for L in range(3)]
            qlines = [0, 1, 2]
        else:
            wl = [("qkv", None, 0, L * 128) for L in range(3, 8)]
            qlines = [3, 4, 5, 6, 7]
        ring = self.start_role(wl, False)
        ring.limit = len(ring.chunks) - 11
        PK = 228

        def epi_q(n):
            self.phi(ring, accA)
            self.pack_F(accA, PQ[n])

        def epi_k():
            self.phi(ring, accA)
            self.pack_S(accA, PK)

        def epi_v():
            self.epi_kv_spare(ring, PK)

        def gate():
            gw, bc, D = vT + 8, vT + 12, vT + 20
            k.wait(vm="gw")
            for n in range(16):
                bb = bc + (n & 1) * 4
                for q in range(4):
                    k.I("v_mov_b32_dpp v%d, v%d row_newbcast:%d row_mask:0xf bank_mask:0xf" % (bb + q, gw + q, n))
                for b in range(2):
                    k.I("v_mfma_f32_16x16x32_bf16 %s, %s, %s, %s" % (V(D + 4 * b, 4), V(bb, 4), A((n * 2 + b) * 4, 4), "0" if n == 0 else V(D + 4 * b, 4)))
                ring.pace()
            for b in range(2):
                k.I("v_mul_f32_e64 v%d, -v%d, v%d" % (D + 4 * b, D + 4 * b, vL2e))
            for b in range(2):
                k.I("v_exp_f32 v%d, v%d" % (D + 4 * b, D + 4 * b))
            for b in range(2):
                k.I("v_add_f32 v%d, 1.0, v%d" % (D + 4 * b, D + 4 * b))
            for b in range(2):
                k.I("v_rcp_f32 v%d, v%d" % (D + 4 * b, D + 4 * b))
            k.I("v_lshlrev_b32 v%d, 2, v%d" % (gw, vI))
            k.I("s_lshl_b32 s%d, s%d, 7" % (sT0, sPart))
            k.I("s_add_u32 s%d, s%d, %d" % (sT0, sT0, WS_GATE))
            for b in range(2):
                k.vmem("buffer_store_dword v%d, v%d, %s, s%d offen%s sc1" % (D + 4 * b, gw, srd(S_WS), sT0, " offset:64" if b else ""), tag="pub_st")

        def gw_load():
            gw = vT + 8
            t = vT + 30
            k.I("s_lshl_b32 s%d, s%d, 2" % (sT0, sRot1))
            k.I("v_add_u32 v%d, s%d, v%d" % (t, sT0, vI))
            k.I("v_and_b32 v%d, 15, v%d" % (t, t))
            k.I("v_lshl_add_u32 v%d, v%d, 2, v%d" % (t, t, vG))
            k.I("v_lshlrev_b32 v%d, 4, v%d" % (t, t))
            k.vmem("buffer_load_dwordx4 %s, v%d, %s, 0 offen" % (V(gw, 4), t, srd(S_GW)), tag="gw")

        if s == 0:
            lines = [dict(orient="S", acc=accA, epi=epi_k),
                     dict(orient="S", acc=accA, epi=epi_v),
                     dict(orient="F", acc=accA, epi=lambda: epi_q(0), hooks={6: lambda: self.flag_store("s%d" % sFlagOff, "pub_st")}),
                     dict(orient="F", acc=accA, epi=lambda: epi_q(1)),
                     dict(orient="F", acc=accA, epi=lambda: epi_q(2))]
        else:
            lines = [dict(orient="F", acc=accA, epi=lambda: (gate(), epi_q(0)), hooks={8: gw_load})]
            lines += [dict(orient="F", acc=accA, epi=(lambda n=n: epi_q(n))) for n in range(1, 5)]
        self.run_lines(ring, lines)
        self.stamp(6)
        FL = vT
        k.I("s_lshr_b32 s%d, s%d, 2" % (sT0, sT64))
        k.I("s_lshl_b32 s%d, s%d, 9" % (sT2, sT0))
        k.I("s_add_u32 s%d, s%d, %d" % (sT2, sT2, WS_FKV))
        txt = self.poll_issue(FL, vL8, "s%d" % sT2, 0, "fkv")
        self.poll_check(FL, txt, "fkv")
        self.stamp(7)
        KP = [accA + 4 * n for n in range(8)] + [vWf + 4 * n for n in range(8)]
        k.I("s_lshl_b32 s%d, s%d, 16" % (sT1, sT64))
        k.I("s_lshl_b32 s%d, s%d, 14" % (sT2, sW))
        k.I("s_add_u32 s%d, s%d, s%d" % (sT1, sT1, sT2))
        k.I("s_add_u32 s%d, s%d, %d" % (sT1, sT1, WS_KVP))
        for n in range(16):
            if n and (n & 3) == 0:
                k.I("s_add_u32 s%d, s%d, 4096" % (sT1, sT1))
            k.vmem("buffer_load_dwordx4 %s, v%d, %s, s%d offen%s sc1" % (V(KP[n], 4), vL16, srd(S_WS), sT1, " offset:%d" % ((n & 3) * 1024) if n & 3 else ""),
                   tag=("kp", n))
        ZR, za = vT + 4, vT + 2
        k.I("s_lshl_b32 s%d, s%d, 14" % (sT0, sT0))
        k.I("s_add_u32 s%d, s%d, s%d" % (sT0, sT0, sW4k))
        k.I("s_and_b32 s%d, s%d, 3" % (sT2, sT64))
        k.I("s_lshl_b32 s%d, s%d, 6" % (sT2, sT2))
        k.I("s_add_u32 s%d, s%d, s%d" % (sT0, sT0, sT2))
        k.I("s_add_u32 s%d, s%d, %d" % (sT0, sT0, WS_ZP))
        k.I("v_lshlrev_b32 v%d, 4, v%d" % (za, vG))
        k.I("v_lshl_add_u32 v%d, v%d, 8, v%d" % (za, vI, za))
        k.vmem("buffer_load_dwordx4 %s, v%d, %s, s%d offen sc1" % (V(ZR, 4), za, srd(S_WS), sT0), tag="zp")
        for n in range(1, 16):
            k.wait(vm=("kp", n))
            for h in range(2):
                k.I("v_pk_add_f32 %s, %s, %s" % (V(KP[0] + 2 * h, 2), V(KP[0] + 2 * h, 2), V(KP[n] + 2 * h, 2)))
        k.wait(vm="zp")
        self.stamp("R1")
        for ctl in ("row_ror:8", "row_ror:4", "row_ror:2", "row_ror:1"):
            for q in range(4):
                k.I("v_add_f32_dpp v%d, v%d, v%d %s row_mask:0xf bank_mask:0xf" % (ZR + q, ZR + q, ZR + q, ctl))
        slot = ring.free[-1] * 16384
        la = vT + 3
        k.I("v_add_u32 v%d, %d, v%d" % (la, slot, vL16))
        k.I("v_add_u32 v%d, s%d, v%d" % (za, sW4k, la))
        k.ds("ds_write_b128 v%d, %s" % (za, V(KP[0], 4)))
        k.ds("ds_write_b128 v%d, %s offset:1024" % (za, V(ZR, 4)))
        k.wait(lg="all")
        k.I("s_barrier")
        for w in range(4):
            k.ds("ds_read_b128 %s, v%d offset:%d" % (V(accA + 8 * w, 4), la, w * 4096))
            k.ds("ds_read_b128 %s, v%d offset:%d" % (V(accA + 8 * w + 4, 4), la, w * 4096 + 1024))
        k.wait(lg="all")
        k.I("s_barrier")
        for w in range(1, 4):
            for h in range(4):
                k.I("v_pk_add_f32 %s, %s, %s" % (V(accA + 2 * h, 2), V(accA + 2 * h, 2), V(accA + 8 * w + 2 * h, 2)))
        for h in range(4):
            k.I("v_cvt_pk_bf16_f32 v%d, v%d, v%d" % (accA + 8 + h, accA + 2 * h, accA + 2 * h + 1))
        self.stamp("R2")
        k.I("s_lshl_b32 s%d, s%d, 10" % (sT0, sT64))
        k.I("s_add_u32 s%d, s%d, %d" % (sT0, sT0, WS_KVF))
        k.vmem("buffer_store_dwordx4 %s, v%d, %s, s%d offen sc1" % (V(accA + 8, 4), vL16, srd(S_WS), sT0), tag="kvf_st")
        k.I("s_lshl_b32 s%d, s%d, 3" % (sT0, sT64))
        k.I("s_add_u32 s%d, s%d, %d" % (sT0, sT0, WS_FKF))
        self.flag_store("s%d" % sT0, "kvf_st")
        self.stamp("R3")
        k.I("v_and_b32 v%d, 0xf8, v%d" % (FL + 2, vL8))
        k.I("s_mov_b32 s%d, %d" % (sT2, WS_FKF))
        txt = self.poll_issue(FL, FL + 2, "s%d" % sT2, 0, "fkf")
        self.poll_check(FL, txt, "fkf", mask_lo=(0x00000fff if s == 0 else 0xfffff000))
        self.stamp(8)
        KF = 128
        for n, L in enumerate(qlines):
            k.I("s_mov_b32 s%d, %d" % (sT0, WS_KVF + L * 4096))
            for cb in range(4):
                k.vmem("buffer_load_dwordx4 %s, v%d, %s, s%d offen%s sc1" % (A(KF + (n * 4 + cb) * 4, 4), vL16, srd(S_WS), sT0, " offset:%d" % (cb * 1024) if cb else ""),
                       tag=("kf", n))
        k.I("s_mul_i32 s%d, s%d, %d" % (sBase, sPart, 2 * 44 * 1024))
        k.I("s_add_u32 s%d, s%d, %d" % (sBase, sBase, WS_A3))
        for n, L in enumerate(qlines):
            k.wait(vm=("kf", n))
            if n == 0:
                self.stamp("R4")
            NUM, DEN, RC = accA, vWf, 244
            P = 228 if (n & 1) == 0 else vT
            for b in range(2):
                for cb in range(4):
                    q = b * 4 + cb
                    kf = KF + (n * 4 + cb) * 4
                    k.I("v_mfma_f32_16x16x16_bf16 %s, %s, %s, 0" % (V(DEN + q * 4, 4), A(kf + 2, 2), V(PQ[n] + q * 2, 2)))
                    k.I("v_mfma_f32_16x16x16_bf16 %s, %s, %s, 0" % (V(NUM + q * 4, 4), A(kf, 2), V(PQ[n] + q * 2, 2)))
            for q in range(8):
                k.I("v_add_f32 v%d, v%d, v%d" % (RC + q, vEps, DEN + q * 4))
            for q in range(8):
                k.I("v_rcp_f32 v%d, v%d" % (RC + q, RC + q))
            for q in range(8):
                for e in range(4):
                    k.I("v_mul_f32 v%d, v%d, v%d" % (NUM + q * 4 + e, NUM + q * 4 + e, RC + q))
            self.pack_F(NUM, P)
            k.I("s_add_u32 s%d, s%d, %d" % (sT0, sBase, L * 2048))
            k.I("s_add_u32 s%d, s%d, %d" % (sT1, sT0, 44 * 1024))
            for b in range(2):
                for pr in range(2):
                    k.vmem("buffer_store_dwordx4 %s, v%d, %s, s%d offen%s sc1" % (V(P + b * 8 + pr * 4, 4), vL16, srd(S_WS), sT0 + b, " offset:1024" if pr else ""),
                           tag="pub_st")
        k.I("s_lshr_b32 s%d, s%d, 1" % (sFlagOff, sPart))
        k.I("s_lshl_b32 s%d, s%d, 8" % (sFlagOff, sFlagOff))
        k.I("s_and_b32 s%d, s%d, 1" % (sT1, sW))
        k.I("s_lshl_b32 s%d, s%d, 3" % (sT1, sT1))
        k.I("s_add_u32 s%d, s%d, s%d" % (sFlagOff, sFlagOff, sT1))
        k.I("s_add_u32 s%d, s%d, %d" % (sFlagOff, sFlagOff, WS_FH + (28 + 2 * s) * 8))
        self.stamp(9)
        return ring

    def epi_kv_spare(self, ring, pk):
        k = self.k
        for q in range(16):
            k.I("v_mov_b32 v%d, v%d" % (vT + 8 + q, pk + q))
        self.epi_kv(ring, accC, accA, pk=vT + 8)

    def build(self):
        k = self.k
        self.prologue()
        k.I("s_cmp_eq_u32 s%d, 14" % sR)
        k.I("s_cbranch_scc1 L_roleS0")
        k.I("s_cmp_eq_u32 s%d, 15" % sR)
        k.I("s_cbranch_scc1 L_roleS1")
        k.I("s_cmp_eq_u32 s%d, 1" % sAB)
        k.I("s_cbranch_scc1 L_roleB")
        s0 = k.snapshot()
        ra = self.role_main(0)
        k.I("s_nop 7")
        k.I("s_branch L_P2")
        sa = k.snapshot()
        k.label("L_roleB")
        k.restore(s0)
        rb = self.role_main(1)
        k.I("s_nop 7")
        sb = k.snapshot()
        assert ra.state()[:4] == rb.state()[:4], (ra.state(), rb.state())
        k.label("L_P2")
        k.join([sa, sb])
        rb.last_t = -10 ** 9
        self.phase2(rb)
        self.phase3(rb)
        k.I("s_cmp_lg_u32 s2, 0")
        k.I("s_cbranch_scc1 L_end")
        k.vmem("buffer_store_dwordx2 %s, v%d, %s, 0 offen sc1" % (V(vTag, 2), vZero, srd(S_WS)))
        if self.opt.stamps:
            k.I("s_load_dwordx2 s[4:5], s[0:1], 80")
            k.I("s_memrealtime s[8:9]")
            k.I("s_waitcnt lgkmcnt(0)")
            k.I("s_sub_u32 s8, s8, s100")
            k.I("v_mov_b32 v%d, s8" % vT)
            k.vmem("global_store_dword v%d, v%d, s[4:5]" % (vZero, vT))
            for i in range(1, 16):
                k.I("s_sub_u32 s8, s%d, s98" % (sStamp0 + 2 * i))
                k.I("v_mov_b32 v%d, s8" % (vT + i))
                k.vmem("global_store_dword v%d, v%d, s[4:5] offset:%d" % (vZero, vT + i, 4 * i))
        k.I("s_branch L_end")
        snaps, rings = [], []
        for s in range(2):
            k.comment("---------------- role S%d ----------------" % s)
            k.label("L_roleS%d" % s)
            k.restore(s0)
            r = self.role_spare(s)
            r.flush()
            k.I("s_nop 7")
            if s == 0:
                k.I("s_branch L_P3s")
            snaps.append(k.snapshot())
            rings.append(r)
        assert rings[0].state()[:4] == rings[1].state()[:4]
        k.label("L_P3s")
        k.join(snaps)
        self.phase3(rings[1])
        k.label("L_end")
        k.I("s_endpgm")
        k.tail.append("L_code_end:")
        k.tail.append("    s_endpgm")
        return k.text()


HEADER = """; Fused gated_mix(linear attention block, gMLP mixer): one persistent launch, 256 workgroups x 256 threads.
; Generated by gen/gen.py (hand-written generator).
; Kernarg: A_x, A_wqkv, A_wo, B_x, B_w_in, B_w_sp, B_b_sp, B_w_out, gate_w, out, debug, ws
; @launch grid=(256,1,1) block=(256,1,1) lds=163840
.amdgcn_target "amdgcn-amd-amdhsa--gfx950"
.text
.globl %s
.p2align 8
.type %s,@function
%s:
""" % (NAME, NAME, NAME)

FOOTER = """.section .rodata,"a"
.p2align 6
.amdhsa_kernel %s
  .amdhsa_next_free_vgpr 512
  .amdhsa_next_free_sgpr 102
  .amdhsa_accum_offset 256
  .amdhsa_group_segment_fixed_size 0
  .amdhsa_kernarg_size 96
  .amdhsa_user_sgpr_count 2
  .amdhsa_user_sgpr_kernarg_segment_ptr 1
  .amdhsa_system_sgpr_workgroup_id_x 1
.end_amdhsa_kernel
""" % NAME


def generate(**kw):
    opt = Opt()
    for a, b in kw.items():
        assert hasattr(opt, a), a
        setattr(opt, a, b)
    g = Gen(opt)
    body = g.build()
    return HEADER + body + FOOTER


if __name__ == "__main__":
    out = sys.argv[1]
    kw = {}
    for a in sys.argv[2:]:
        key, val = a.split("=")
        try:
            val = int(val)
        except ValueError:
            pass
        kw[key] = val
    open(out, "w").write(generate(**kw))
```
